```python
import torch

def _softmax(x, axis=-1):
    return torch.softmax(x, dim=axis)
def _gelu(x):
    return torch.nn.functional.gelu(x, approximate="tanh")
def _silu(x):
    return torch.nn.functional.silu(x)
def _sigmoid(x):
    return torch.sigmoid(x)
def _layernorm(x, axis=-1, eps=1e-5):
    m = x.mean(dim=axis, keepdim=True)
    v = x.var(dim=axis, keepdim=True, unbiased=False)
    return (x - m) / torch.sqrt(v + eps)
def _scatter_add(tgt, idx, src, axis=0):
    return tgt.clone().index_add_(axis, idx, src)
def _segment_sum(src, seg, n):
    out = torch.zeros((n,) + src.shape[1:], dtype=src.dtype)
    return out.index_add_(0, seg, src)
def _pad(x, pw):
    flat = tuple(v for pair in reversed(pw) for v in pair)
    return torch.nn.functional.pad(x, flat)

kernel_name = 'sequential_preLN__linear_attn_block__mixer_channel_mlp__prompt'

def setup_inputs():

    _w = (lambda a: (lambda t: t.to(torch.bfloat16) if t.is_floating_point() else t)(torch.as_tensor(a)))
    def _A_setup():
        B, S, D = 1, 2048, 512
        return {
            "x": _w((lambda *s: torch.randn(*s, dtype=torch.bfloat16) * 0.05)(B, S, D)),
            "wqkv": _w((lambda *s: torch.randn(*s, dtype=torch.bfloat16) * 0.1)(D, 3 * D)),
            "wo": _w((lambda *s: torch.randn(*s, dtype=torch.bfloat16) * 0.05)(D, D)),
        }
    _A_in = _A_setup()

    def _B_setup():
        B, S, D, F = 1, 2048, 512, 1376
        return {
            "x": _w((lambda *s: torch.randn(*s, dtype=torch.bfloat16) * 0.05)(B, S, D)),
            "w1": _w((lambda *s: torch.randn(*s, dtype=torch.bfloat16) * 3.2)(D, F) * (D ** -0.5)),
            "b1": _w((lambda *s: torch.randn(*s, dtype=torch.bfloat16) * 0.8)(F)),
            "w2": _w((lambda *s: torch.randn(*s, dtype=torch.bfloat16) * 0.05)(F, D) * (F ** -0.5)),
            "b2": _w((lambda *s: torch.randn(*s, dtype=torch.bfloat16) * 0.05)(D)),
        }
    _B_in = _B_setup()

    return {
        "A_x": _A_in["x"],
        "A_wqkv": _A_in["wqkv"],
        "A_wo": _A_in["wo"],
        "B_x": _B_in["x"],
        "B_w1": _B_in["w1"],
        "B_b1": _B_in["b1"],
        "B_w2": _B_in["w2"],
        "B_b2": _B_in["b2"],
    }

def reference(A_x, A_wqkv, A_wo, B_x, B_w1, B_b1, B_w2, B_b2):
    def _A_ref(x, wqkv, wo):
        B, S, D = x.shape
        H = 32; Dh = D // H
        qkv = (lambda x, *d: x.permute(*d))((x @ wqkv).reshape(B, S, 3, H, Dh), 2, 0, 3, 1, 4)
        q, k, v = qkv[0], qkv[1], qkv[2]
        phi = lambda t: torch.where(t > 0, t + 1, torch.exp(t)) + 1e-6
        pq, pk = phi(q), phi(k)
        kv = torch.einsum("bhsd,bhse->bhde", pk, v)
        z = torch.einsum("bhsd->bhd", pk)
        num = torch.einsum("bhqd,bhde->bhqe", pq, kv)
        den = torch.einsum("bhqd,bhd->bhq", pq, z)[..., None] + 1e-6
        o = num / den
        return (lambda x, *d: x.permute(*d))(o, 0, 2, 1, 3).reshape(B, S, D) @ wo

    def _B_ref(x, w1, b1, w2, b2):
        y = _layernorm(x, axis=-1)
        h = _gelu(torch.einsum("bsd,df->bsf", y, w1) + b1)
        return torch.einsum("bsf,fd->bsd", h, w2) + b2

    x = A_x
    h = x + _A_ref(_layernorm(x, axis=-1), A_wqkv, A_wo)
    h2 = h + _B_ref(_layernorm(h, axis=-1), B_w1, B_b1, B_w2, B_b2)
    return h2
```

```python
import re

TRANS = ('v_exp_f32', 'v_log_f32', 'v_rcp_f32', 'v_rsq_f32', 'v_sqrt_f32', 'v_sin_f32', 'v_cos_f32')


def regs_of(tok):
    tok = tok.strip()
    neg = tok.lstrip('-')
    if neg.startswith('abs(') or neg.startswith('|'):
        neg = neg.replace('abs(', '').replace(')', '').replace('|', '')
    m = re.fullmatch(r'([vas])(\d+)', neg)
    if m:
        return [(m.group(1), int(m.group(2)))]
    m = re.fullmatch(r'([vas])\[(\d+):(\d+)\]', neg)
    if m:
        return [(m.group(1), i) for i in range(int(m.group(2)), int(m.group(3)) + 1)]
    if neg in ('vcc', 'vcc_lo', 'vcc_hi'):
        return [('x', 'vcc')]
    if neg in ('exec', 'exec_lo', 'exec_hi'):
        return [('x', 'exec')]
    if neg == 'm0':
        return [('x', 'm0')]
    return []


def split_ops(rest):
    ops, depth, cur = [], 0, ''
    for ch in rest:
        if ch in '[(':
            depth += 1
        if ch in '])':
            depth -= 1
        if ch == ',' and depth == 0:
            ops.append(cur.strip())
            cur = ''
        else:
            cur += ch
    if cur.strip():
        ops.append(cur.strip())
    mods = ''
    if ops:
        parts = ops[-1].split(None, 1)
        ops[-1] = parts[0]
        mods = parts[1] if len(parts) > 1 else ''
    return ops, mods


class Ins:
    __slots__ = ('text', 'op', 'kind', 'rd', 'wr', 'srcA', 'srcB', 'srcC', 'passes', 'data', 'dpp', 'states', 'wide')

    def __init__(self, text):
        self.text = text
        t = text.split(';')[0].strip()
        p = t.split(None, 1)
        op = p[0]
        ops, mods = split_ops(p[1]) if len(p) > 1 else ([], '')
        self.op = op
        self.rd, self.wr = [], []
        self.srcA = self.srcB = self.srcC = None
        self.passes = 0
        self.data = []
        self.dpp = False
        self.states = 1
        self.wide = False
        R = [regs_of(o) for o in ops]
        flat = lambda l: [x for y in l for x in y]
        if op.startswith('v_mfma'):
            self.kind = 'mfma'
            self.wr = R[0]
            self.srcA, self.srcB, self.srcC = R[1], R[2], R[3]
            self.rd = R[1] + R[2] + R[3]
            self.passes = 8 if '32x32' in op else 4
        elif op.startswith('v_'):
            self.kind = 'valu'
            base = op.replace('_e32', '').replace('_e64', '').replace('_dpp', '')
            if 'row_' in mods or 'quad_perm' in mods or op.endswith('_dpp'):
                self.dpp = True
            if base.startswith('v_permlane'):
                self.wr = R[0] + R[1]
                self.rd = R[0] + R[1]
            elif base in ('v_add_co_u32', 'v_sub_co_u32', 'v_addc_co_u32', 'v_subb_co_u32'):
                self.wr = R[0] + R[1]
                self.rd = flat(R[2:])
            else:
                self.wr = R[0]
                self.rd = flat(R[1:])
                if base in ('v_fmac_f32', 'v_dot2c_f32_bf16', 'v_writelane_b32') or self.dpp:
                    self.rd = self.rd + R[0]
                if base == 'v_cndmask_b32' and len(ops) == 3:
                    self.rd = self.rd + [('x', 'vcc')]
        elif op.startswith('ds_read'):
            self.kind = 'ds'
            self.wr = R[0]
            self.rd = flat(R[1:])
        elif op.startswith('ds_write'):
            self.kind = 'ds'
            self.rd = flat(R)
        elif op.startswith('buffer_load'):
            self.kind = 'vm'
            if re.search(r'\blds\b', mods):
                self.rd = flat(R) + [('x', 'm0')]
            else:
                self.wr = R[0]
                self.rd = flat(R[1:])
        elif op.startswith('buffer_store') or op.startswith('buffer_atomic'):
            self.kind = 'vm'
            self.rd = flat(R)
            self.data = R[0]
            self.wide = op.endswith('x4') or op.endswith('x3')
            if op.startswith('buffer_atomic') and 'sc0' in mods:
                self.wr = R[0]
        elif op in ('buffer_wbl2', 'buffer_inv'):
            self.kind = 'vm'
        elif op.startswith('s_load') or op in ('s_memtime', 's_memrealtime'):
            self.kind = 'smem'
            self.wr = R[0]
            self.rd = flat(R[1:])
        elif op == 's_nop':
            self.kind = 'nop'
            self.states = int(ops[0]) + 1
        elif op.startswith('s_'):
            self.kind = 'salu'
            if op.startswith(('s_cmp', 's_bitcmp', 's_cbranch', 's_branch', 's_waitcnt', 's_barrier', 's_endpgm',
                              's_sleep', 's_setprio', 's_setpc')):
                self.rd = flat(R)
                if 'vcc' in op:
                    self.rd = [('x', 'vcc')]
            elif op.endswith('saveexec_b64'):
                self.wr = R[0] + [('x', 'exec')]
                self.rd = flat(R[1:])
            else:
                self.wr = R[0]
                self.rd = flat(R[1:])
        else:
            raise ValueError('unknown instruction ' + text)


class Asm:
    def __init__(self):
        self.lines = []
        self.hist = []
        self.vmq = []
        self.lgq = []
        self.seq = 0
        self.nops = 0
        self.count = 0

    def raw(self, text):
        self.lines.append(text)

    def comment(self, text):
        self.lines.append('; ' + text)

    def label(self, name):
        self.lines.append(name + ':')

    def _push(self, ins):
        self.lines.append('    ' + ins.text)
        self.hist.append(ins)
        self.count += 1
        if len(self.hist) > 40:
            self.hist.pop(0)

    def _wait(self, vm=None, lg=None):
        parts = []
        if vm is not None:
            vm = min(vm, 63)
            if len(self.vmq) > vm:
                parts.append('vmcnt(%d)' % vm)
                self.vmq = self.vmq[len(self.vmq) - vm:] if vm else []
        if lg is not None:
            if any(e[2] for e in self.lgq):
                lg = 0
            lg = min(lg, 15)
            if len(self.lgq) > lg:
                parts.append('lgkmcnt(%d)' % lg)
                self.lgq = self.lgq[len(self.lgq) - lg:] if lg else []
        if parts:
            self._push(Ins('s_waitcnt ' + ' '.join(parts)))

    def wait_vm(self, seq):
        idx = [i for i, e in enumerate(self.vmq) if e[0] <= seq]
        if idx:
            self._wait(vm=len(self.vmq) - 1 - idx[-1])

    def wait_lg(self, seq=None):
        if seq is None:
            self._wait(lg=0)
            return
        idx = [i for i, e in enumerate(self.lgq) if e[0] <= seq]
        if idx:
            self._wait(lg=len(self.lgq) - 1 - idx[-1])

    def wait_all(self):
        self._wait(vm=0, lg=0)

    def force_wait(self, text):
        self._push(Ins('s_waitcnt ' + text))
        m = re.search(r'vmcnt\((\d+)\)', text)
        if m:
            n = int(m.group(1))
            self.vmq = self.vmq[max(0, len(self.vmq) - n):] if n else []
        m = re.search(r'lgkmcnt\((\d+)\)', text)
        if m:
            n = int(m.group(1))
            self.lgq = self.lgq[max(0, len(self.lgq) - n):] if n else []

    def _need(self, x):
        need = 0
        dist = 0
        rd, wr = set(x.rd), set(x.wr)
        for p in reversed(self.hist):
            req = 0
            pw = set(p.wr)
            if p.kind == 'mfma':
                big = 8 if p.passes == 4 else 12
                if x.kind == 'mfma':
                    if pw & (set(x.srcA) | set(x.srcB)):
                        req = big
                    elif pw & set(x.srcC):
                        if not (x.srcC == p.wr and x.passes == p.passes and x.op == p.op):
                            req = big
                    elif pw & wr:
                        req = big
                elif x.kind in ('valu', 'vm', 'ds'):
                    if pw & (rd | wr):
                        req = big
                    elif x.kind == 'valu' and set(p.srcC) & wr:
                        req = 3 if p.passes == 4 else 7
            elif p.kind == 'valu':
                vw = {r for r in pw if r[0] in 'va'}
                sw = pw - vw
                if x.kind == 'mfma' and vw & rd:
                    req = 2
                if x.kind == 'valu':
                    if vw & rd:
                        if x.dpp or x.op.startswith('v_permlane'):
                            req = max(req, 2)
                        if x.op.startswith(('v_readfirstlane', 'v_readlane')):
                            req = max(req, 1)
                        if p.op.replace('_e64', '').replace('_e32', '') in TRANS:
                            req = max(req, 1)
                    if sw & rd:
                        req = max(req, 4 if x.op.startswith(('v_readlane', 'v_writelane')) else 2)
                if x.kind == 'vm' and sw & rd:
                    req = max(req, 5)
                if x.kind in ('salu', 'smem') and sw & rd:
                    req = max(req, 1)
            elif p.kind == 'salu':
                if ('x', 'm0') in pw and x.kind == 'vm' and ('x', 'm0') in rd:
                    req = 1
            elif p.kind == 'vm':
                if p.wide and set(p.data) & wr:
                    req = 2
            need = max(need, req - dist)
            dist += p.states
            if dist >= 20:
                break
        return need

    def __call__(self, text):
        x = Ins(text)
        touched = set(x.rd) | set(x.wr)
        vm = lg = None
        for i, e in enumerate(self.vmq):
            if e[1] & touched:
                vm = len(self.vmq) - 1 - i
        for i, e in enumerate(self.lgq):
            if e[1] & touched:
                lg = len(self.lgq) - 1 - i
        if vm is not None or lg is not None:
            self._wait(vm, lg)
        n = self._need(x)
        if n > 0:
            self._push(Ins('s_nop %d' % (n - 1)))
            self.nops += n
        self._push(x)
        self.seq += 1
        if x.kind == 'vm':
            self.vmq.append((self.seq, set(x.wr)))
            assert len(self.vmq) <= 63 + 64
        elif x.kind == 'ds':
            self.lgq.append((self.seq, set(x.wr), False))
        elif x.kind == 'smem':
            self.lgq.append((self.seq, set(x.wr), True))
        return self.seq

    def fence(self, states=12):
        probe = 0
        dist = 0
        for p in reversed(self.hist):
            if p.kind == 'mfma':
                probe = max(probe, (8 if p.passes == 4 else 12) - dist)
            elif p.kind == 'valu':
                probe = max(probe, 5 - dist)
            elif p.kind in ('vm', 'salu'):
                probe = max(probe, 2 - dist)
            dist += p.states
            if dist >= 20:
                break
        if probe > 0:
            self._push(Ins('s_nop %d' % (probe - 1)))

    def text(self):
        return '\n'.join(self.lines) + '\n'
```

```python
import sys, math, struct
from asmlib import Asm

NAME = 'sequential_preLN__linear_attn_block__mixer_channel_mlp__prompt'
KERN = NAME + '_kernel'

KV_OFF = 0x0
Z_OFF = 0x80000
SY_OFF = 0x90000
H_OFF = 0x100000
O_OFF = 0x300000
HH_OFF = 0x500000
HH_G = 2 * 86 * 1024
WS_USE = HH_OFF + 32 * HH_G
STAMP_OFF = 0xB00000
BIG = 0x40000000

RING = 65536
NSLOT = 22
MISC = RING + NSLOT * 4096
LDS_BYTES = 163840


def f32(x):
    return '0x%08x' % struct.unpack('<I', struct.pack('<f', x))[0]


def vr(b, n):
    return 'v[%d:%d]' % (b, b + n - 1) if n > 1 else 'v%d' % b


def ar(b, n):
    return 'a[%d:%d]' % (b, b + n - 1) if n > 1 else 'a%d' % b


sX, sWQ, sWO, sW1, sW2, sOUT, sWS, sB1, sB2, sDBG, sCODE = [
    's[%d:%d]' % (b, b + 3) for b in (28, 32, 36, 40, 44, 48, 52, 56, 60, 64, 68)]
G, J, W, AQ, WL, T0, T1, SPIN = ['s%d' % i for i in range(72, 80)]
sQq = ['s%d' % i for i in range(80, 84)]
sQx = ['s%d' % i for i in range(84, 88)]
sQo = ['s%d' % i for i in range(88, 92)]
sQ1 = ['s%d' % i for i in range(92, 96)]
sQi = ['s%d' % i for i in range(96, 100)]
C_E6, C_L2E, C_GELU = 's[4:5]', 's[6:7]', 's[8:9]'
FAST, SYB, HEAD, NT = 's10', 's11', 's14', 's15'
EXS = 's[12:13]'
T2, T3, T4, T5 = 's16', 's17', 's18', 's19'
DBGP = 's[22:23]'
TILE0 = 's26'
HI16 = 's27'

vL = 'v1'
vA = [2, 3, 4, 5]
vH = [6, 7, 8, 9]
vTrA, vTrB = 10, 11
vXg, vWq, vWo, vW1, vW1m, vLin, vOst0, vOst1, vHHst, vW2g, vT32, vL16 = range(12, 24)
ONES, SEL, XRES, B1P, B2P = 24, 28, 32, 40, 46
VSTAMP = 255


class Gen:
    def __init__(self, stamps=False, fast=False):
        self.A = Asm()
        self.stamps = stamps
        self.fast = fast
        self.nst = 0
        self.stnames = []
        self.lab = 0

    def stamp(self, name):
        if not self.stamps:
            return
        A = self.A
        A.wait_lg()
        A('s_memtime s[100:101]')
        A.wait_lg()
        A('v_writelane_b32 v%d, s100, %d' % (VSTAMP, self.nst))
        self.stnames.append(name)
        self.nst += 1

    def newlab(self, p):
        self.lab += 1
        return 'L_%s%d' % (p, self.lab)

    def inter(self, mf, fill, per=2):
        A = self.A
        fill = list(fill)
        for m in mf:
            A(m)
            for _ in range(per):
                if fill:
                    self.run(fill.pop(0))
        for f in fill:
            self.run(f)

    def run(self, f):
        if callable(f):
            return f()
        return self.A(f)

    def slot_addr(self, slot, extra=0):
        off = slot * 4096 + extra
        return (vTrA, off) if off < 65536 else (vTrB, off - 65536)

    def dma_unit(self, srd, vaddr, sbase, const, slot, flags=''):
        def go():
            A = self.A
            A('s_add_u32 m0, %s, %d' % (WL, slot))
            A('s_add_u32 %s, %s, %d' % (T0, sbase, const))
            go.seq = A('buffer_load_dwordx4 v%d, %s, %s offen %slds' % (vaddr, srd, T0, flags))
            return go.seq
        go.seq = None
        return go

    def u_qkv(self, blk, s, slot):
        return self.dma_unit(sWQ, vWq, sQq[s >> 2], (s & 3) * 32 * 3072 + blk * 1024, RING + slot * 4096)

    def u_wo(self, s, slot):
        return self.dma_unit(sWO, vWo, sQo[s >> 2], (s & 3) * 32 * 1024, RING + slot * 4096)

    def u_w1(self, b, s, slot):
        return self.dma_unit(sW1, vW1m if b == 2 else vW1, sQ1[s >> 2], (s & 3) * 32 * 2752 + b * 128,
                             RING + slot * 4096)

    def u_x(self, s):
        return self.dma_unit(sX, vXg, sQx[s >> 2], (s & 3) * 64, s * 4096)

    def u_img(self, base, s):
        return self.dma_unit(sWS, vLin, sQi[s >> 2], base + (s & 3) * 4096, s * 4096, 'sc1 ')

    def tr16(self, dst, slot):
        out = []
        for kq in range(2):
            r, off = self.slot_addr(slot, kq * 512)
            out.append('ds_read_b64_tr_b16 %s[%d:%d], v%d offset:%d' % (dst[0], dst[1] + 2 * kq, dst[1] + 2 * kq + 1, r, off))
        return out

    def areads(self, addr, dst, s):
        return ['ds_read_b128 %s, v%d offset:%d' % (vr(dst + 4 * t, 4), addr[t], s * 4096) for t in range(4)]

    def barrier(self):
        self.A('s_barrier')

    def store(self, text):
        self.A(text + ' sc1')

    def stores(self, lst):
        A = self.A
        if not self.fast:
            seq = None
            for t in lst:
                seq = A(t + ' sc1')
            return seq
        l1, l2 = self.newlab('sl'), self.newlab('sd')
        A('s_cmp_lg_u32 %s, 0' % FAST)
        for t in lst:
            pass
        A.fence()
        A('s_cbranch_scc1 %s' % l1)
        seq = None
        for t in lst:
            seq = A(t + ' sc1')
        A('s_branch %s' % l2)
        A.label(l1)
        for t in lst:
            A.raw('    ' + t)
        A.label(l2)
        return seq

    def spin_tail(self, lab):
        A = self.A
        A('s_cbranch_vccz %s_x' % lab)
        A('s_add_u32 %s, %s, 1' % (SPIN, SPIN))
        A('s_cmp_lt_u32 %s, 0x200000' % SPIN)
        A('s_cbranch_scc1 %s' % lab)
        A.label(lab + '_x')

    def set_flag(self, off):
        A = self.A
        l = self.newlab('fl')
        A('s_cmp_lg_u32 %s, 0' % W)
        A('s_cbranch_scc1 %s' % l)
        A('s_lshl_b32 %s, %s, 2' % (T0, J))
        A('s_add_u32 %s, %s, %s' % (T0, T0, SYB))
        A('v_mov_b32 v50, 1')
        A('s_mov_b64 %s, exec' % EXS)
        A('s_mov_b64 exec, 1')
        t = 'buffer_store_dword v50, off, %s, %s offset:%d' % (sWS, T0, off)
        if self.fast:
            l1, l2 = self.newlab('f1'), self.newlab('f2')
            A('s_cmp_lg_u32 %s, 0' % FAST)
            A('s_cbranch_scc1 %s' % l1)
            A.raw('    ' + t + ' sc1')
            A('s_branch %s' % l2)
            A.label(l1)
            A.raw('    ' + t)
            A.label(l2)
        else:
            A.raw('    ' + t + ' sc1')
        A('s_mov_b64 exec, %s' % EXS)
        A.label(l)

    def wait_flags(self, off):
        A = self.A
        lab = self.newlab('pw')
        A('v_and_b32 v50, 7, %s' % vL)
        A('v_lshlrev_b32 v50, 2, v50')
        A.wait_all()
        A.fence()
        A.label(lab)
        A('buffer_load_dword v51, v50, %s, %s offen offset:%d sc1' % (sWS, SYB, off))
        A.force_wait('vmcnt(0)')
        A('v_cmp_ne_u32 vcc, 1, v51')
        self.spin_tail(lab)

    def rbf2(self, dlo, dhi, a, b, tmp):
        A = self.A
        A('v_cvt_pk_bf16_f32 v%d, v%d, v%d' % (tmp, a, b))
        if dhi is not None:
            A('v_and_b32 v%d, %s, v%d' % (dhi, HI16, tmp))
        A('v_lshlrev_b32 v%d, 16, v%d' % (dlo, tmp))

    def stats(self, SUM, GRAM, t, double):
        A = self.A
        q, mu, var, m, v, s, rs, x, y, a, b, ad = range(t, t + 12)
        A('v_and_b32 v%d, 1, %s' % (x, vL))
        A('v_cmp_eq_u32 vcc, 1, v%d' % x)
        A('v_cndmask_b32 v%d, v%d, v%d, vcc' % (q, GRAM, GRAM + 1))
        A('v_cndmask_b32 v%d, v%d, v%d, vcc' % (y, GRAM + 2, GRAM + 3))
        A('v_and_b32 v%d, 2, %s' % (x, vL))
        A('v_cmp_eq_u32 vcc, 2, v%d' % x)
        A('v_mul_f32 v%d, %s, v%d' % (mu, f32(1.0 / 512), SUM))
        A('v_cndmask_b32 v%d, v%d, v%d, vcc' % (q, q, y))
        A('v_mul_f32 v%d, v%d, v%d' % (x, mu, mu))
        A('v_mul_f32 v%d, %s, v%d' % (q, f32(1.0 / 512), q))
        A('v_sub_f32 v%d, v%d, v%d' % (var, q, x))
        A('v_max_f32 v%d, 0, v%d' % (var, var))
        self.rbf2(m, v, mu, var, x)
        A('v_add_f32 v%d, %s, v%d' % (v, f32(1e-5), v))
        self.rbf2(v, None, v, v, x)
        A('v_sqrt_f32 v%d, v%d' % (s, v))
        self.rbf2(s, None, s, s, x)
        A('v_rcp_f32 v%d, v%d' % (rs, s))
        if not double:
            A('v_mov_b32 v%d, v%d' % (a, rs))
            A('v_mul_f32_e64 v%d, -v%d, v%d' % (b, m, rs))
        else:
            A('v_sub_f32 v%d, v%d, v%d' % (x, mu, m))
            A('v_mul_f32 v%d, v%d, v%d' % (y, var, rs))
            A('v_mul_f32 v%d, v%d, v%d' % (x, x, rs))
            A('v_mul_f32 v%d, v%d, v%d' % (y, y, rs))
            self.rbf2(x, y, x, y, q)
            A('v_add_f32 v%d, %s, v%d' % (y, f32(1e-5), y))
            self.rbf2(y, None, y, y, q)
            A('v_sqrt_f32 v%d, v%d' % (y, y))
            self.rbf2(y, None, y, y, q)
            A('v_rcp_f32 v%d, v%d' % (y, y))
            A('v_fmac_f32 v%d, v%d, v%d' % (x, m, rs))
            A('v_mul_f32 v%d, v%d, v%d' % (a, rs, y))
            A('v_mul_f32_e64 v%d, -v%d, v%d' % (b, x, y))
        A('v_bfe_u32 v%d, %s, 2, 2' % (x, vL))
        A('v_lshrrev_b32 v%d, 4, %s' % (y, vL))
        A('v_cmp_eq_u32 vcc, v%d, v%d' % (x, y))
        A('v_and_b32 v%d, 15, %s' % (ad, vL))
        A('s_lshl_b32 %s, %s, 6' % (T0, W))
        A('s_add_u32 %s, %s, %d' % (T0, T0, MISC))
        A('v_lshl_add_u32 v%d, v%d, 2, %s' % (ad, ad, T0))
        A('s_and_saveexec_b64 %s, vcc' % EXS)
        A('ds_write_b32 v%d, v%d' % (ad, a))
        A('ds_write_b32 v%d, v%d offset:256' % (ad, b))
        A('s_mov_b64 exec, %s' % EXS)

    def read_ab_T(self, dst, tmp):
        A = self.A
        A('v_and_b32 v%d, 15, %s' % (tmp, vL))
        A('v_lshlrev_b32 v%d, 2, v%d' % (tmp, tmp))
        for t in range(4):
            A('s_xor_b32 %s, %s, %d' % (T0, W, t))
            A('s_lshl_b32 %s, %s, 6' % (T0, T0))
            A('s_add_u32 %s, %s, %d' % (T0, T0, MISC))
            A('v_add_u32 v%d, %s, v%d' % (tmp + 1 + t, T0, tmp))
            A('ds_read2_b32 %s, v%d offset0:0 offset1:64' % (vr(dst + 2 * t, 2), tmp + 1 + t))

    def phi_pairs(self, pairs):
        A = self.A
        for d, x, t in pairs:
            A('v_pk_mul_f32 %s, %s, %s' % (vr(t, 2), vr(x, 2), C_L2E))
        for d, x, t in pairs:
            A('v_exp_f32_e64 v%d, v%d clamp' % (t, t))
            A('v_exp_f32_e64 v%d, v%d clamp' % (t + 1, t + 1))
        for d, x, t in pairs:
            A('v_max_f32 v%d, s4, v%d' % (x, x))
            A('v_max_f32 v%d, s4, v%d' % (x + 1, x + 1))
        for d, x, t in pairs:
            A('v_pk_add_f32 %s, %s, %s' % (vr(x, 2), vr(x, 2), vr(t, 2)))
        for d, x, t in pairs:
            A('v_cvt_pk_bf16_f32 v%d, v%d, v%d' % (d, x, x + 1))

    def pairswap(self, p):
        A = self.A
        A('v_permlane16_swap_b32 v%d, v%d' % (p, p + 2))
        A('v_permlane16_swap_b32 v%d, v%d' % (p + 1, p + 3))

    def prologue(self):
        A = self.A
        A('s_cmp_ge_u32 s2, 256')
        A('s_cbranch_scc1 L_end')
        A('s_load_dwordx16 s[4:19], s[0:1], 0')
        A('s_load_dwordx4 s[20:23], s[0:1], 64')
        A('s_load_dwordx2 s[24:25], s[0:1], 80')
        if self.stamps:
            A('s_memrealtime s[100:101]')
        A('s_getpc_b64 s[68:69]')
        A('s_mov_b32 s70, CODE_BYTES')
        A('s_mov_b32 s71, 0x20000')
        A('v_and_b32 %s, 63, v0' % vL)
        A('v_lshrrev_b32 v50, 6, v0')
        A('s_lshr_b32 %s, s2, 3' % T0)
        A('s_and_b32 %s, %s, 15' % (T0, T0))
        A('s_lshl_b32 %s, %s, 11' % (T0, T0))
        A('v_lshlrev_b32 v51, 7, v0')
        A('v_cmp_gt_u32 vcc, 16, v0')
        A('v_readfirstlane_b32 %s, v50' % W)
        A('v_mov_b32 v52, %d' % BIG)
        A('v_cndmask_b32 v51, v52, v51, vcc')
        A('buffer_load_dword v254, v51, %s, %s offen' % (sCODE, T0))
        A('s_and_b32 %s, s2, 31' % G)
        A('s_lshr_b32 %s, s2, 5' % J)
        A('s_lshr_b32 %s, %s, 3' % (AQ, G))
        A('s_lshl_b32 %s, %s, 10' % (WL, W))
        A('s_mov_b32 %s, 0' % SPIN)
        A('v_lshrrev_b32 v54, 2, %s' % vL)
        A('v_lshrrev_b32 v55, 5, %s' % vL)
        A('v_mul_u32_u24 v55, 3, v55')
        A('v_and_b32 v56, 3, %s' % vL)
        A('v_xor_b32 v55, v55, v56')
        A('v_lshlrev_b32 v55, 4, v55')
        A('v_lshl_add_u32 v55, v54, 10, v55')
        A('s_lshl_b32 %s, %s, 14' % (T0, W))
        A('v_add_u32 v%d, %s, v55' % (vXg, T0))
        A('v_lshrrev_b32 v57, 5, %s' % vL)
        A('v_bfe_u32 v58, %s, 2, 2' % vL)
        A('v_lshl_add_u32 v57, v57, 2, v58')
        A('s_lshl_b32 %s, %s, 3' % (T0, W))
        A('v_add_u32 v59, %s, v57' % T0)
        A('s_and_b32 %s, %s, 1' % (T0, W))
        A('s_lshl_b32 %s, %s, 1' % (T0, T0))
        A('v_xor_b32 v60, %s, v56' % T0)
        A('v_bfe_u32 v61, %s, 4, 1' % vL)
        A('v_lshlrev_b32 v62, 6, v61')
        A('v_lshl_add_u32 v60, v60, 4, v62')
        A('s_movk_i32 %s, 3072' % T0)
        A('v_mad_u32_u24 v%d, v59, %s, v60' % (vWq, T0))
        for t in range(4):
            A('s_add_u32 %s, %s, %d' % (T0, AQ, t))
            A('s_and_b32 %s, %s, 3' % (T0, T0))
            A('s_mul_i32 %s, %s, %d' % (sQq[t], T0, 128 * 3072))
            A('s_lshl_b32 %s, %s, 8' % (sQx[t], T0))
            A('s_lshl_b32 %s, %s, 17' % (sQo[t], T0))
            A('s_mul_i32 %s, %s, %d' % (sQ1[t], T0, 128 * 2752))
            A('s_lshl_b32 %s, %s, 14' % (sQi[t], T0))
        A('s_lshl_b32 %s, %s, 7' % (T0, J))
        A('s_lshl_b32 %s, %s, 16' % (T1, G))
        for t in range(4):
            A('s_add_u32 %s, %s, %s' % (sQq[t], sQq[t], T0))
            A('s_add_u32 %s, %s, %s' % (sQx[t], sQx[t], T1))
            A('s_add_u32 %s, %s, %s' % (sQo[t], sQo[t], T0))
            A('s_add_u32 %s, %s, %s' % (sQi[t], sQi[t], T1))
        A.wait_lg()
        if self.stamps:
            A('v_writelane_b32 v%d, s100, 63' % VSTAMP)
        for srd, p, size in ((28, 4, 2097152), (32, 6, 1572864), (52, 24, STAMP_OFF + 0x100000 if self.stamps else WS_USE)):
            A('s_mov_b32 s%d, s%d' % (srd, p))
            A('s_mov_b32 s%d, s%d' % (srd + 1, p + 1))
            A('s_mov_b32 s%d, %d' % (srd + 2, size))
            A('s_mov_b32 s%d, 0x20000' % (srd + 3))
        self.stamp('args')
        A('v_lshlrev_b32 v63, 10, v0')
        A('v_cmp_gt_u32 vcc, 64, v0')
        A('s_add_u32 %s, %s, %s' % (T0, T0, T1))
        A('v_cndmask_b32 v63, v52, v63, vcc')
        A('buffer_load_dword v253, v63, %s, %s offen' % (sX, T0))
        self.KV = {}
        self.X = {}
        for s in range(11):
            self.KV[s] = (self.u_qkv(1, s, 2 * s), self.u_qkv(2, s, 2 * s + 1))
        for s in range(16):
            self.X[s] = self.u_x(s)
        for s in range(4):
            self.KV[s][0]()
            self.KV[s][1]()
        for srd, p, size in ((36, 8, 524288), (40, 12, 1409024), (44, 16, 1409024), (48, 20, 2097152),
                             (56, 14, 2752), (60, 18, 1024), (64, 22, 256)):
            A('s_mov_b32 s%d, s%d' % (srd, p))
            A('s_mov_b32 s%d, s%d' % (srd + 1, p + 1))
            A('s_mov_b32 s%d, %d' % (srd + 2, size))
            A('s_mov_b32 s%d, 0x20000' % (srd + 3))
        A('s_mul_i32 %s, %s, 11' % (TILE0, J))
        A('s_and_b32 %s, %s, 1' % (T0, J))
        A('s_add_u32 %s, %s, %s' % (TILE0, TILE0, T0))
        A('s_min_u32 %s, %s, 76' % (TILE0, TILE0))
        A('s_cmp_ge_u32 %s, 6' % J)
        A('s_cselect_b32 %s, 1, %s' % (T0, T0))
        A('s_cmp_eq_u32 %s, 0' % T0)
        A('s_cselect_b32 %s, 12, 10' % NT)
        A('v_lshrrev_b32 v64, 4, %s' % vL)
        A('v_lshlrev_b32 v65, 3, v64')
        A('s_add_u32 %s, %s, %s' % (T0, TILE0, W))
        A('s_lshl_b32 %s, %s, 5' % (T0, T0))
        for c in range(3):
            A('buffer_load_dwordx2 %s, v65, %s, %s offen offset:%d' % (vr(B1P + 2 * c, 2), sB1, T0, c * 128))
        A('v_and_b32 v66, 7, %s' % vL)
        A('v_lshlrev_b32 v66, 4, v66')
        A('s_lshl_b32 %s, %s, 7' % (T0, J))
        A('buffer_load_dwordx4 %s, v66, %s, %s offen' % (vr(B2P, 4), sB2, T0))
        A('s_lshl_b32 %s, %s, 8' % (SYB, G))
        A('s_add_u32 %s, %s, %d' % (SYB, SYB, SY_OFF))
        A('v_lshlrev_b32 v%d, 4, %s' % (vL16, vL))
        A('v_add_u32 v%d, %s, v%d' % (vLin, WL, vL16))
        for r in range(4):
            A('v_mov_b32 v%d, -1' % (68 + r))
            A('v_mov_b32 v%d, 0' % (72 + r))
        A('v_cmp_gt_u32 vcc, 128, v0')
        A('v_cndmask_b32 v76, v52, v%d, vcc' % vLin)
        A('v_cmp_gt_u32 vcc, 8, v0')
        A('v_cndmask_b32 v77, v52, v%d, vcc' % vLin)
        A('s_mul_i32 %s, %s, 18432' % (T0, G))
        A.fence()
        A('s_cmp_lg_u32 %s, 0' % J)
        A('s_cbranch_scc1 L_noinit')
        for i in range(5):
            A.raw('    buffer_store_dwordx4 v[68:71], v%d, %s, %s offen sc1' % (vLin if i < 4 else 76, sWS, T0))
            A.raw('    s_add_u32 %s, %s, 4096' % (T0, T0))
        A.raw('    buffer_store_dwordx4 v[72:75], v77, %s, %s offen sc1' % (sWS, SYB))
        A.label('L_noinit')
        for s in range(4):
            self.X[s]()
        for s in range(4, 8):
            self.KV[s][0]()
            self.KV[s][1]()
        for s in range(4, 8):
            self.X[s]()
        for s in range(8, 11):
            self.KV[s][0]()
            self.KV[s][1]()
        for s in range(8, 16):
            self.X[s]()
        self.stamp('issued')
        A('s_mov_b32 s4, %s' % f32(1e-6))
        A('s_mov_b32 s5, %s' % f32(1e-6))
        A('s_mov_b32 s6, %s' % f32(math.log2(math.e)))
        A('s_mov_b32 s7, %s' % f32(math.log2(math.e)))
        c0 = -2.0 * math.sqrt(2.0 / math.pi) * math.log2(math.e)
        A('s_mov_b32 s8, %s' % f32(c0 * 0.044715))
        A('s_mov_b32 s9, %s' % f32(c0))
        A('s_mov_b32 %s, 0xffff0000' % HI16)
        A('s_mov_b32 %s, 0' % FAST)
        A('s_lshl_b32 %s, %s, 2' % (HEAD, J))
        A('s_add_u32 %s, %s, %s' % (HEAD, HEAD, W))
        A('s_lshl_b32 %s, %s, 5' % (T0, TILE0))
        for t in range(4):
            A('s_add_u32 %s, %s, %s' % (sQ1[t], sQ1[t], T0))
        A('v_lshl_add_u32 v%d, v59, 10, v60' % vWo)
        A('s_movk_i32 %s, 2752' % T0)
        A('v_mad_u32_u24 v%d, v59, %s, v60' % (vW1, T0))
        A('s_cmp_eq_u32 %s, 10' % NT)
        A('s_cselect_b32 %s, %d, 0' % (T0, BIG))
        A('v_mul_lo_u32 v62, v61, %s' % T0)
        A('v_add_u32 v%d, v62, v%d' % (vW1m, vW1))
        A('v_lshlrev_b32 v62, 6, v61')
        A('v_lshl_add_u32 v62, v56, 4, v62')
        A('v_lshl_add_u32 v%d, v57, 10, v62' % vW2g)
        A('v_and_b32 v67, 15, %s' % vL)
        A('v_lshrrev_b32 v68, 3, v67')
        A('v_mul_u32_u24 v68, 3, v68')
        A('v_xor_b32 v68, v68, v64')
        A('v_lshlrev_b32 v68, 4, v68')
        A('v_lshl_add_u32 v68, v67, 6, v68')
        for t in range(4):
            A('s_xor_b32 %s, %s, %d' % (T0, W, t))
            A('s_lshl_b32 %s, %s, 10' % (T0, T0))
            A('v_add_u32 v%d, %s, v68' % (vA[t], T0))
            A('v_add_u32 v%d, %s, v%d' % (vH[t], T0, vL16))
        A('v_and_b32 v69, 1, v64')
        A('s_and_b32 %s, %s, 1' % (T0, W))
        A('v_xor_b32 v70, %s, v69' % T0)
        A('v_lshlrev_b32 v71, 5, v70')
        A('v_lshl_add_u32 v71, v64, 10, v71')
        A('v_lshl_add_u32 v71, v58, 6, v71')
        A('v_lshl_add_u32 v71, v56, 3, v71')
        A('s_lshr_b32 %s, %s, 1' % (T1, W))
        A('s_lshl_b32 %s, %s, 8' % (T1, T1))
        A('s_add_u32 %s, %s, %d' % (T1, T1, RING))
        A('v_add_u32 v%d, %s, v71' % (vTrA, T1))
        A('v_add_u32 v%d, 0x10000, v%d' % (vTrB, vTrA))
        A('v_lshrrev_b32 v72, 1, v64')
        A('v_xor_b32 v73, %s, v69' % W)
        A('v_lshlrev_b32 v73, 10, v73')
        A('v_lshl_add_u32 v73, v72, 8, v73')
        A('v_lshl_add_u32 v73, v67, 4, v73')
        A('s_lshl_b32 %s, %s, 9' % (T0, T0))
        A('s_lshr_b32 %s, %s, 1' % (T1, HEAD))
        A('s_lshl_b32 %s, %s, 12' % (T1, T1))
        A('s_add_u32 %s, %s, %s' % (T0, T0, T1))
        A('s_lshl_b32 %s, %s, 16' % (T1, G))
        A('s_add_u32 %s, %s, %s' % (T0, T0, T1))
        A('v_add_u32 v%d, %s, v73' % (vOst0, T0))
        A('v_xor_b32 v%d, 0x800, v%d' % (vOst1, vOst0))
        A('v_lshlrev_b32 v74, 9, v72')
        A('v_lshl_add_u32 v74, v70, 8, v74')
        A('v_lshl_add_u32 v%d, v67, 4, v74' % vHHst)
        A('v_lshrrev_b32 v74, 5, %s' % vL)
        A('v_lshlrev_b32 v74, 10, v74')
        A('v_lshl_add_u32 v74, v61, 5, v74')
        A('v_lshl_add_u32 v74, v58, 6, v74')
        A('v_lshl_add_u32 v%d, v56, 3, v74' % vT32)
        for r in range(4):
            A('v_mov_b32 v%d, 0x3f803f80' % (ONES + r))
        A('v_lshlrev_b32 v75, 3, v69')
        A('v_sub_u32 v75, v67, v75')
        A('v_and_b32 v76, 1, v75')
        A('v_lshlrev_b32 v76, 4, v76')
        A('s_movk_i32 %s, 0x3f80' % T0)
        A('v_lshlrev_b32_e64 v76, v76, %s' % T0)
        A('v_ashrrev_i32 v75, 1, v75')
        for r in range(4):
            A('v_cmp_eq_u32 vcc, %d, v75' % r)
            A('v_cndmask_b32 v%d, 0, v76, vcc' % (SEL + r))

    def phaseA(self):
        A = self.A
        accK, accV, csK, csV, SUM, GRAM = 52, 68, 84, 88, 92, 96
        fa = [100, 124]
        kslot = {s: 2 * s for s in range(11)}
        kslot.update({11: 0, 12: 2, 13: 4, 14: 6, 15: 8})
        for s in range(11, 16):
            self.KV[s] = (self.u_qkv(1, s, kslot[s]), self.u_qkv(2, s, kslot[s] + 1))
        qslot = [10, 11, 12, 13, 14, 15, 16, 17, 18, 19, 20, 21, 0, 1, 2, 3]
        Q = [self.u_qkv(0, s, qslot[s]) for s in range(16)]
        self.oslot = list(range(4, 20))
        self.O = [self.u_wo(s, self.oslot[s]) for s in range(16)]
        self.w1slot = {}
        self.W1 = {}
        for i, sl in enumerate([20, 21, 0, 1, 2, 3]):
            self.w1slot[(0, i)] = sl
            self.W1[(0, i)] = self.u_w1(0, i, sl)
        refill = {4: [u for s in range(11, 15) for u in self.KV[s]],
                  8: list(self.KV[15]) + Q[0:6],
                  12: Q[6:14]}

        def reads(s):
            b = fa[s & 1]
            return (self.tr16(('v', b + 16), kslot[s]) + self.areads(vA, b, s)[:1] + self.tr16(('v', b + 20), kslot[s] + 1)
                    + self.areads(vA, b, s)[1:])

        def mf(s):
            b = fa[s & 1]
            c = (lambda r: '0') if s == 0 else (lambda r: vr(r, 4))
            M = 'v_mfma_f32_16x16x32_bf16 %s, %s, %s, %s'
            wk, wv, one = vr(b + 16, 4), vr(b + 20, 4), vr(ONES, 4)
            out = [M % (vr(csK, 4), one, wk, c(csK)), M % (vr(accK, 4), vr(b, 4), wk, c(accK)),
                   M % (vr(SUM, 4), one, vr(b, 4), c(SUM)), M % (vr(GRAM, 4), vr(b, 4), vr(b, 4), c(GRAM)),
                   M % (vr(csV, 4), one, wv, c(csV)), M % (vr(accV, 4), vr(b, 4), wv, c(accV))]
            for t in range(1, 4):
                out.append(M % (vr(accK + 4 * t, 4), vr(b + 4 * t, 4), wk, c(accK + 4 * t)))
                out.append(M % (vr(accV + 4 * t, 4), vr(b + 4 * t, 4), wv, c(accV + 4 * t)))
            return out

        A.wait_vm(self.X[3].seq)
        self.barrier()
        A('s_or_b32 %s, %s, %s' % (T0, J, W))
        A('s_cmp_lg_u32 %s, 0' % T0)
        A('s_cbranch_scc1 L_noarr')
        A('v_mov_b32 v50, 1')
        A('s_mov_b64 %s, exec' % EXS)
        A('s_mov_b64 exec, 1')
        A.raw('    buffer_atomic_add v50, off, %s, 0' % sDBG)
        A('s_mov_b64 exec, %s' % EXS)
        A.label('L_noarr')
        self.stamp('A0')
        for r in reads(0):
            A(r)
        for s in range(16):
            fill = []
            if s + 1 < 16:
                if (s + 1) % 4 == 0:
                    A.wait_lg()
                    last = s + 4
                    A.wait_vm(max(self.X[last].seq, self.KV[last][1].seq or 0) if self.KV[last][1].seq else self.X[last].seq)
                    self.barrier()
                    self.stamp('A%d' % (s + 1))
                    fill += reads(s + 1) + refill[s + 1]
                else:
                    fill += reads(s + 1)
            self.inter(mf(s), fill)
        self.stamp('Akv')
        A('buffer_load_dword v200, off, %s, 0 sc1' % sDBG)
        self.stats(SUM, GRAM, 100, False)
        A.wait_lg()
        A.wait_vm(Q[7].seq)
        self.barrier()
        for u in Q[14:16] + self.O[0:6]:
            u()
        a4, b4, u0 = 148, 164, 112
        A('s_lshl_b32 %s, %s, 6' % (T0, W))
        A('v_lshrrev_b32 v100, 4, %s' % vL)
        A('v_lshlrev_b32 v100, 4, v100')
        for t in range(4):
            A('s_xor_b32 %s, %s, %d' % (T0, W, t))
            A('s_lshl_b32 %s, %s, 6' % (T0, T0))
            A('s_add_u32 %s, %s, %d' % (T0, T0, MISC))
            A('v_add_u32 v%d, %s, v100' % (101 + t, T0))
            A('ds_read_b128 %s, v%d' % (vr(a4 + 4 * t, 4), 101 + t))
            A('ds_read_b128 %s, v%d offset:256' % (vr(b4 + 4 * t, 4), 101 + t))
        AB = 188
        self.read_ab_T(AB, 105)
        A('s_lshr_b32 %s, %s, 1' % (T0, HEAD))
        A('s_lshl_b32 %s, %s, 2' % (T1, AQ))
        A('s_sub_u32 %s, %s, %s' % (T0, T0, T1))
        A('s_and_b32 %s, %s, 15' % (T0, T0))
        A('s_lshl_b32 %s, %s, 12' % (T0, T0))
        A('v_lshrrev_b32 v110, 5, %s' % vL)
        A('s_and_b32 %s, %s, 1' % (T1, W))
        A('s_lshl_b32 %s, %s, 1' % (T1, T1))
        A('v_add_u32 v110, %s, v110' % T1)
        A('v_bfe_u32 v111, %s, 3, 1' % vL)
        A('v_mul_u32_u24 v111, 3, v111')
        A('v_xor_b32 v110, v110, v111')
        A('v_lshlrev_b32 v110, 4, v110')
        A('v_and_b32 v111, 15, %s' % vL)
        A('v_lshl_add_u32 v110, v111, 6, v110')
        A('v_bfe_u32 v111, %s, 4, 1' % vL)
        A('v_lshl_add_u32 v110, v111, 3, v110')
        for t in range(4):
            A('s_xor_b32 %s, %s, %d' % (T1, W, t))
            A('s_lshl_b32 %s, %s, 10' % (T1, T1))
            A('s_add_u32 %s, %s, %s' % (T1, T1, T0))
            A('v_add_u32 v%d, %s, v110' % (196 + t, T1))
            A('ds_read_b64 %s, v%d' % (vr(XRES + 2 * t, 2), 196 + t))
        PK, VV = 132, 140
        for t in range(4):
            for h in range(2):
                i = 4 * t + 2 * h
                A('v_pk_fma_f32 %s, %s, %s, %s' % (vr(u0 + i, 2), vr(b4 + i, 2), vr(csK, 2), C_E6))
                A('v_pk_fma_f32 %s, %s, %s, %s' % (vr(accK + i, 2), vr(a4 + i, 2), vr(accK + i, 2), vr(u0 + i, 2)))
        self.phi_pairs([(PK + i, accK + 2 * i, u0 + 2 * i) for i in range(8)])
        for t in range(4):
            for h in range(2):
                i = 4 * t + 2 * h
                A('v_pk_mul_f32 %s, %s, %s' % (vr(u0 + i, 2), vr(b4 + i, 2), vr(csV, 2)))
                A('v_pk_fma_f32 %s, %s, %s, %s' % (vr(accV + i, 2), vr(a4 + i, 2), vr(accV + i, 2), vr(u0 + i, 2)))
                A('v_cvt_pk_bf16_f32 v%d, v%d, v%d' % (VV + i // 2, accV + i, accV + i + 1))
        KVP, ZP = 112, 116
        M = 'v_mfma_f32_16x16x32_bf16 %s, %s, %s, %s'
        A(M % (vr(KVP, 4), vr(PK, 4), vr(VV, 4), '0'))
        A(M % (vr(ZP, 4), vr(PK, 4), vr(ONES, 4), '0'))
        A(M % (vr(KVP, 4), vr(PK + 4, 4), vr(VV + 4, 4), vr(KVP, 4)))
        A(M % (vr(ZP, 4), vr(PK + 4, 4), vr(ONES, 4), vr(ZP, 4)))
        A('v_mov_b32 v124, %d' % BIG)
        A('v_lshrrev_b32 v125, 5, %s' % vL)
        A('v_and_b32 v126, 15, %s' % vL)
        A('v_lshlrev_b32 v125, 8, v125')
        A('v_lshl_add_u32 v125, v126, 4, v125')
        A('v_and_b32 v127, 16, %s' % vL)
        A('v_cmp_eq_u32 vcc, 0, v127')
        A('v_lshrrev_b32 v127, 4, %s' % vL)
        A('v_lshlrev_b32 v127, 9, v127')
        A('v_cndmask_b32 v125, v124, v125, vcc')
        A('v_cmp_eq_u32 vcc, 0, v126')
        A('s_lshl_b32 %s, %s, 14' % (T2, HEAD))
        A('s_lshl_b32 %s, %s, 9' % (T0, G))
        A('v_cndmask_b32 v127, v124, v127, vcc')
        A('s_add_u32 %s, %s, %s' % (T4, T2, T0))
        A('s_lshl_b32 %s, %s, 11' % (T3, HEAD))
        A('s_add_u32 %s, %s, %d' % (T3, T3, Z_OFF))
        A('s_lshl_b32 %s, %s, 4' % (T0, G))
        A('s_add_u32 %s, %s, %s' % (T5, T3, T0))
        lab = self.newlab('c0')
        A('v_cmp_ne_u32 vcc, 32, v200')
        A('s_cbranch_vccz %s_x' % lab)
        A.label(lab)
        A.raw('    buffer_load_dword v200, off, %s, 0 sc1' % sDBG)
        A.raw('    s_waitcnt vmcnt(0)')
        A('v_cmp_ne_u32 vcc, 32, v200')
        self.spin_tail(lab)
        A('v_cvt_pk_bf16_f32 v120, v%d, v%d' % (KVP, KVP + 1))
        A('v_cvt_pk_bf16_f32 v121, v%d, v%d' % (KVP + 2, KVP + 3))
        for r in range(4):
            A('v_min_u32 v%d, -2, v%d' % (ZP + r, ZP + r))
        A('v_min_u32 v120, -2, v120')
        A('v_min_u32 v121, -2, v121')
        A('v_mov_b32 v122, v120')
        A('v_mov_b32 v123, v121')
        self.pairswap(120)
        A('buffer_store_dwordx4 v[120:123], v125, %s, %s offen sc1' % (sWS, T4))
        A('buffer_store_dwordx4 %s, v127, %s, %s offen sc1' % (vr(ZP, 4), sWS, T5))
        A('s_getreg_b32 %s, hwreg(HW_REG_XCC_ID)' % T0)
        A('s_and_b32 %s, %s, 15' % (T0, T0))
        A('s_add_u32 %s, %s, 1' % (FAST, T0))
        A('v_mov_b32 v128, %s' % FAST)
        A('v_cmp_eq_u32 vcc, 0, v0')
        A('s_lshl_b32 %s, %s, 2' % (T0, J))
        A('v_mov_b32 v129, %s' % T0)
        A('v_cndmask_b32 v129, v124, v129, vcc')
        A('buffer_store_dword v128, v129, %s, %s offen sc1' % (sWS, SYB))
        self.stamp('pubkv')
        accQ, csQ = 52, 84
        fq = [100, 124]

        def qreads(s):
            b = fq[s & 1]
            return self.tr16(('v', b + 16), qslot[s]) + self.areads(vA, b, s)

        def qmf(s):
            b = fq[s & 1]
            c = (lambda r: '0') if s == 0 else (lambda r: vr(r, 4))
            wq = vr(b + 16, 4)
            return [M % (vr(csQ, 4), wq, vr(ONES, 4), c(csQ))] + \
                   [M % (vr(accQ + 4 * t, 4), wq, vr(b + 4 * t, 4), c(accQ + 4 * t)) for t in range(4)]
        for r in qreads(0):
            A(r)
        for s in range(16):
            fill = []
            if s + 1 < 16:
                if s + 1 == 8:
                    A.wait_lg()
                    A.wait_vm(Q[15].seq)
                    self.barrier()
                    fill += qreads(s + 1) + self.O[6:14]
                else:
                    fill += qreads(s + 1)
            self.inter(qmf(s), fill)
        A.wait_lg()
        self.barrier()
        for u in self.O[14:16] + [self.W1[(0, i)] for i in range(6)]:
            u()
        self.stamp('Aq')
        PQ = 180
        for t in range(4):
            for h in range(2):
                i = 4 * t + 2 * h
                ab = vr(AB + 2 * t, 2)
                A('v_pk_fma_f32 %s, %s, %s, %s op_sel:[0,1,0] op_sel_hi:[1,1,1]' % (vr(u0 + i, 2), vr(csQ + 2 * h, 2), ab, C_E6))
                A('v_pk_fma_f32 %s, %s, %s, %s op_sel:[0,0,0] op_sel_hi:[1,0,1]' % (vr(accQ + i, 2), vr(accQ + i, 2), ab, vr(u0 + i, 2)))
        self.phi_pairs([(PQ + i, accQ + 2 * i, u0 + 2 * i) for i in range(8)])
        KL, ZL, IDS = 100, 164, 172
        A('v_and_b32 v173, 15, %s' % vL)
        A('v_lshrrev_b32 v174, 4, %s' % vL)
        A('v_lshlrev_b32 v174, 9, v174')
        A('v_lshl_add_u32 v173, v173, 4, v174')
        A('v_and_b32 v174, 7, %s' % vL)
        A('v_lshlrev_b32 v174, 2, v174')
        lab = self.newlab('kv')
        A.wait_lg()
        A.fence()
        self.stamp('phiq')
        A.label(lab)
        A('buffer_load_dwordx4 %s, v173, %s, %s offen sc1' % (vr(ZL, 4), sWS, T3))
        A('buffer_load_dwordx4 %s, v173, %s, %s offen offset:256 sc1' % (vr(ZL + 4, 4), sWS, T3))
        A('buffer_load_dword v%d, v174, %s, %s offen sc1' % (IDS, sWS, SYB))
        for i in range(16):
            if i % 4 == 0:
                A('s_add_u32 %s, %s, %d' % (T0, T2, KV_OFF + i * 1024))
            A('buffer_load_dwordx4 %s, v%d, %s, %s offen offset:%d sc1' % (vr(KL + 4 * i, 4), vL16, sWS, T0, (i % 4) * 1024))
        A('v_max3_u32 v175, v%d, v%d, v%d' % (ZL, ZL + 1, ZL + 2))
        rest = list(range(ZL + 3, ZL + 8)) + list(range(KL, KL + 64))
        A('v_add_u32 v176, -1, v%d' % IDS)
        rest = [176] + rest
        for i in range(0, len(rest), 2):
            A('v_max3_u32 v175, v175, v%d, v%d' % (rest[i], rest[i + 1]))
        A.force_wait('vmcnt(0)')
        A('v_cmp_eq_u32 vcc, -1, v175')
        self.spin_tail(lab)
        self.stamp('gath')
        KS = 52
        for i in range(16):
            A(M % (vr(KS, 4), vr(SEL, 4), vr(KL + 4 * i, 4), '0' if i == 0 else vr(KS, 4)))
            if i < 4:
                A('v_add_f32 v%d, v%d, v%d' % (ZL + i, ZL + i, ZL + 4 + i))
            elif i >= 5 and i % 2 == 1 and i < 13:
                for r in range(4):
                    A('v_add_f32_dpp v%d, v%d, v%d row_ror:%d row_mask:0xf bank_mask:0xf' % (
                        ZL + r, ZL + r, ZL + r, 1 << ((i - 5) // 2)))
        A('v_cmp_ne_u32 vcc, %s, v%d' % (FAST, IDS))
        A('v_cvt_pk_bf16_f32 v58, v%d, v%d' % (ZL, ZL + 1))
        A('v_cvt_pk_bf16_f32 v59, v%d, v%d' % (ZL + 2, ZL + 3))
        A('s_cmp_eq_u64 vcc, 0')
        A('s_cselect_b32 %s, 1, 0' % FAST)
        A('v_cvt_pk_bf16_f32 v56, v%d, v%d' % (KS, KS + 1))
        A('v_cvt_pk_bf16_f32 v57, v%d, v%d' % (KS + 2, KS + 3))
        NUM, DEN = 60, 76
        M16 = 'v_mfma_f32_16x16x16_bf16 %s, %s, %s, 0'
        for t in range(4):
            A(M16 % (vr(DEN + 4 * t, 4), 'v[58:59]', vr(PQ + 2 * t, 2)))
        for t in range(4):
            A(M16 % (vr(NUM + 4 * t, 4), 'v[56:57]', vr(PQ + 2 * t, 2)))
        for t in range(4):
            A('v_add_f32 v%d, s4, v%d' % (DEN + 4 * t, DEN + 4 * t))
        for t in range(4):
            A('v_rcp_f32 v%d, v%d' % (DEN + 4 * t, DEN + 4 * t))
        OP = 92
        for t in range(4):
            for h in range(2):
                i = NUM + 4 * t + 2 * h
                A('v_pk_mul_f32 %s, %s, %s op_sel_hi:[1,0]' % (vr(i, 2), vr(i, 2), vr(DEN + 4 * t, 2)))
        for t in range(4):
            for h in range(2):
                i = NUM + 4 * t + 2 * h
                A('v_cvt_pk_bf16_f32 v%d, v%d, v%d' % (OP + 2 * t + h, i, i + 1))
        self.pairswap(OP)
        self.pairswap(OP + 4)
        A('s_mov_b32 %s, %d' % (T0, O_OFF))
        self.stores(['buffer_store_dwordx4 %s, v%d, %s, %s offen' % (vr(OP, 4), vOst0, sWS, T0),
                     'buffer_store_dwordx4 %s, v%d, %s, %s offen' % (vr(OP + 4, 4), vOst1, sWS, T0)])
        A.wait_all()
        self.barrier()
        self.set_flag(32)
        self.stamp('pubo')
        for s in range(16):
            for r in self.tr16(('a', 192 + 4 * s), self.oslot[s]):
                A(r)
        for i in range(6):
            for r in self.tr16(('a', 4 * i), self.w1slot[(0, i)]):
                A(r)
        A.wait_lg()
        self.barrier()

    def img_pass(self, units, mf, hooks=None, staged=True):
        A = self.A
        fb = [100, 116]
        hooks = hooks or {}
        if staged:
            A.wait_vm(units[3].seq)
            self.barrier()
        for r in self.areads(vH, fb[0], 0):
            A(r)
        for s in range(16):
            fill = []
            if s + 1 < 16:
                if staged and (s + 1) % 4 == 0:
                    A.wait_lg()
                    A.wait_vm(units[s + 4].seq)
                    self.barrier()
                fill += self.areads(vH, fb[(s + 1) & 1], s + 1)
            pre, extra = hooks.get(s, (None, []))
            if pre:
                pre()
            self.inter(mf(s, fb[s & 1]), fill + list(extra))

    def phaseB(self):
        A = self.A
        M = 'v_mfma_f32_16x16x32_bf16 %s, %s, %s, %s'
        self.wait_flags(32)
        self.stamp('gotO')
        U = [self.u_img(O_OFF, s) for s in range(16)]
        for u in U:
            u()
        todo = [(0, i) for i in range(6, 16)] + [(1, i) for i in range(12)]
        for sl, k in enumerate(todo):
            self.w1slot[k] = sl
            self.W1[k] = self.u_w1(k[0], k[1], sl)
            self.W1[k]()
        acc = 52

        def mf(s, b):
            return [M % (vr(acc + 4 * t, 4), ar(192 + 4 * s, 4), vr(b + 4 * t, 4), '0' if s == 0 else vr(acc + 4 * t, 4))
                    for t in range(4)]
        self.img_pass(U, mf)
        self.stamp('Bgemm')
        x = 68
        for i in range(8):
            A('v_lshlrev_b32 v%d, 16, v%d' % (x + 2 * i, XRES + i))
            A('v_and_b32 v%d, %s, v%d' % (x + 2 * i + 1, HI16, XRES + i))
        HP = 92
        for i in range(8):
            A('v_pk_add_f32 %s, %s, %s' % (vr(acc + 2 * i, 2), vr(acc + 2 * i, 2), vr(x + 2 * i, 2)))
        for i in range(8):
            A('v_cvt_pk_bf16_f32 v%d, v%d, v%d' % (HP + i, acc + 2 * i, acc + 2 * i + 1))
        self.pairswap(HP)
        self.pairswap(HP + 4)
        A('s_mov_b32 %s, %d' % (T0, H_OFF))
        self.stores(['buffer_store_dwordx4 %s, v%d, %s, %s offen' % (vr(HP, 4), vOst0, sWS, T0),
                     'buffer_store_dwordx4 %s, v%d, %s, %s offen' % (vr(HP + 4, 4), vOst1, sWS, T0)])
        A.wait_all()
        self.barrier()
        self.set_flag(64)
        self.stamp('pubh')
        for k in todo:
            for r in self.tr16(('a', (k[0] * 16 + k[1]) * 4), self.w1slot[k]):
                A(r)
        A.wait_lg()
        self.barrier()

    def w2_unit(self, p):
        def go():
            A = self.A
            if p < 11:
                base, off = T4, p * 2048
            elif p < 19:
                base, off = T5, (p - 11) * 2048
            else:
                base, off = T4, (p - 19) * 2048
            A('s_add_u32 m0, %s, %d' % (base, off))
            A('s_nop 0')
            A('buffer_load_dwordx4 v%d, %s, %s offen lds' % (vW2g, sW2, T2))
            A('s_add_u32 m0, %s, %d' % (base, off + 1024))
            A('s_add_u32 %s, %s, 8192' % (T0, T2))
            go.seq = A('buffer_load_dwordx4 v%d, %s, %s offen lds' % (vW2g, sW2, T0))
            A('s_add_u32 %s, %s, 16384' % (T2, T2))
            A('s_cmp_eq_u32 %s, %s' % (T2, T3))
            A('s_cselect_b32 %s, %s, %s' % (T2, sQq[0], T2))
        go.seq = None
        return go

    def w2_tr(self, p):
        if p < 11:
            r, off = self.vTring, p * 2048
        elif p < 19:
            r, off = self.vTr0, (p - 11) * 2048
        else:
            r, off = self.vTring, (p - 19) * 2048
        out = []
        for ct in range(2):
            for kq in range(2):
                d = p * 8 + ct * 4 + kq * 2
                out.append('ds_read_b64_tr_b16 a[%d:%d], v%d offset:%d' % (d, d + 1, r, off + kq * 512 + ct * 256))
        return out

    def phaseC(self):
        A = self.A
        M = 'v_mfma_f32_16x16x32_bf16 %s, %s, %s, %s'
        self.wait_flags(64)
        self.stamp('gotH')
        U = [self.u_img(H_OFF, s) for s in range(16)]
        for u in U:
            u()
        todo = [(1, i) for i in range(12, 16)] + [(2, i) for i in range(16)]
        for sl, k in enumerate(todo):
            self.w1slot[k] = sl
            self.W1[k] = self.u_w1(k[0], k[1], sl)
            self.W1[k]()
        acc = [52, 68, 84]
        cs = [132, 136, 140]
        SUM, GRAM = 144, 148

        def mf1(s, b):
            c = (lambda r: '0') if s == 0 else (lambda r: vr(r, 4))
            w = ar(4 * s, 4)
            return [M % (vr(cs[0], 4), w, vr(ONES, 4), c(cs[0])), M % (vr(acc[0], 4), w, vr(b, 4), c(acc[0])),
                    M % (vr(SUM, 4), vr(ONES, 4), vr(b, 4), c(SUM)), M % (vr(GRAM, 4), vr(b, 4), vr(b, 4), c(GRAM))] + \
                   [M % (vr(acc[0] + 4 * t, 4), w, vr(b + 4 * t, 4), c(acc[0] + 4 * t)) for t in range(1, 4)]
        self.img_pass(U, mf1)
        self.stamp('C1')
        self.stats(SUM, GRAM, 152, True)
        A('s_mul_i32 %s, %s, 11' % (T0, AQ))
        A('s_add_u32 %s, %s, 1' % (T0, T0))
        A('s_lshr_b32 %s, %s, 1' % (T0, T0))
        A('s_mul_i32 %s, %s, 22' % (T1, W))
        A('s_add_u32 %s, %s, %s' % (T0, T0, T1))
        A('s_lshl_b32 %s, %s, 7' % (T3, J))
        A('s_lshl_b32 %s, %s, 14' % (T2, T0))
        A('s_add_u32 %s, %s, %s' % (T2, T2, T3))
        A('s_lshl_b32 %s, %s, 14' % (sQq[0], T1))
        A('s_add_u32 %s, %s, %s' % (sQq[0], sQq[0], T3))
        A('s_add_u32 %s, %s, %d' % (T3, sQq[0], 22 * 16384))
        A('s_mul_i32 %s, %s, %d' % (sQx[0], G, HH_G))
        A('s_add_u32 %s, %s, %d' % (sQx[0], sQx[0], HH_OFF))
        A('s_lshl_b32 %s, %s, 10' % (sQx[1], T0))
        A('s_add_u32 %s, %s, %s' % (sQx[1], sQx[1], sQx[0]))
        A('s_lshl_b32 %s, %s, 10' % (sQx[2], T1))
        A('s_add_u32 %s, %s, %s' % (sQx[2], sQx[2], sQx[0]))
        A('s_add_u32 %s, %s, %d' % (sQx[3], sQx[2], 22 * 1024))
        A('s_mul_i32 %s, %s, 22528' % (T4, W))
        A('s_add_u32 %s, %s, %d' % (T4, T4, RING))
        A('s_lshl_b32 %s, %s, 14' % (T5, W))
        self.vTring, self.vTr0 = vXg, vWq
        A('v_add_u32 v%d, %s, v%d' % (self.vTring, T4, vT32))
        A('v_add_u32 v%d, %s, v%d' % (self.vTr0, T5, vT32))
        A.wait_lg()
        A.wait_vm(self.W1[todo[-1]].seq)
        self.barrier()
        AB = 164
        self.read_ab_T(AB, 152)
        W2 = [self.w2_unit(p) for p in range(22)]
        self.W2 = W2
        trs = {k: self.tr16(('a', (k[0] * 16 + k[1]) * 4), self.w1slot[k]) for k in todo}
        for r in trs[(2, 0)]:
            A(r)
        order = [(2, i) for i in range(1, 16)] + [(1, i) for i in range(12, 16)]
        allr = [r for k in order for r in trs[k]]

        def c2():
            A.wait_lg()
            self.barrier()
        hooks = {0: (None, allr[0:14]), 1: (None, allr[14:26]), 2: (None, allr[26:38]),
                 4: (c2, W2[0:2]), 5: (None, W2[2:4]), 6: (None, W2[4:6]), 7: (None, W2[6:8]), 8: (None, W2[8:10]),
                 9: (None, W2[10:11])}

        def mf2(s, b):
            c = (lambda r: '0') if s == 0 else (lambda r: vr(r, 4))
            out = []
            for k in (1, 2):
                w = ar((k * 16 + s) * 4, 4)
                out.append(M % (vr(cs[k], 4), w, vr(ONES, 4), c(cs[k])))
                out += [M % (vr(acc[k] + 4 * t, 4), w, vr(b + 4 * t, 4), c(acc[k] + 4 * t)) for t in range(4)]
            return out
        self.img_pass(U, mf2, hooks, staged=False)
        self.stamp('C2')
        HRES = XRES
        A('s_lshl_b32 %s, %s, 1' % (T0, J))
        A('s_lshl_b32 %s, %s, 2' % (T1, AQ))
        A('s_sub_u32 %s, %s, %s' % (T0, T0, T1))
        A('s_and_b32 %s, %s, 15' % (T0, T0))
        A('s_lshl_b32 %s, %s, 12' % (T0, T0))
        A('s_lshr_b32 %s, %s, 1' % (T1, W))
        A('s_lshl_b32 %s, %s, 10' % (T1, T1))
        A('s_add_u32 %s, %s, %s' % (T0, T0, T1))
        A('s_and_b32 %s, %s, 1' % (T1, W))
        A('s_lshl_b32 %s, %s, 7' % (T1, T1))
        A('s_add_u32 %s, %s, %s' % (T0, T0, T1))
        A('v_bfe_u32 v100, %s, 2, 1' % vL)
        A('v_lshlrev_b32 v100, 12, v100')
        A('v_and_b32 v101, 3, %s' % vL)
        A('v_lshl_add_u32 v100, v101, 8, v100')
        A('v_lshrrev_b32 v101, 3, %s' % vL)
        A('v_lshl_add_u32 v100, v101, 4, v100')
        A('v_add_u32 v100, %s, v100' % T0)
        A('ds_read_b128 %s, v100' % vr(HRES, 4))
        A('ds_read_b128 %s, v100 offset:2048' % vr(HRES + 4, 4))
        A.wait_lg()
        self.barrier()
        for p in range(11, 19):
            W2[p]()
        A.wait_vm(W2[10].seq)
        for p in range(11):
            for r in self.w2_tr(p):
                A(r)
        B1F = 100
        for c in range(3):
            for h in range(2):
                A('v_lshlrev_b32 v%d, 16, v%d' % (B1F + 4 * c + 2 * h, B1P + 2 * c + h))
                A('v_and_b32 v%d, %s, v%d' % (B1F + 4 * c + 2 * h + 1, HI16, B1P + 2 * c + h))
        A.wait_lg()
        for p in range(19, 22):
            W2[p]()
        self.stamp('w2a')
        u, e = 112, 172
        HP = 188
        for c in range(3):
            prs = [(t, h) for t in range(4) for h in range(2)]
            xs = [acc[c] + 4 * t + 2 * h for t, h in prs]
            for i, (t, h) in enumerate(prs):
                ab = vr(AB + 2 * t, 2)
                A('v_pk_fma_f32 %s, %s, %s, %s op_sel:[0,1,0] op_sel_hi:[1,1,1]' % (
                    vr(u + 2 * i, 2), vr(cs[c] + 2 * h, 2), ab, vr(B1F + 4 * c + 2 * h, 2)))
            for i, (t, h) in enumerate(prs):
                ab = vr(AB + 2 * t, 2)
                A('v_pk_fma_f32 %s, %s, %s, %s op_sel:[0,0,0] op_sel_hi:[1,0,1]' % (
                    vr(xs[i], 2), vr(xs[i], 2), ab, vr(u + 2 * i, 2)))
            for i in range(8):
                A('v_pk_mul_f32 %s, %s, %s' % (vr(e + 2 * i, 2), vr(xs[i], 2), vr(xs[i], 2)))
            for i in range(8):
                A('v_pk_fma_f32 %s, %s, %s, %s op_sel:[0,0,1] op_sel_hi:[1,0,1]' % (vr(e + 2 * i, 2), vr(e + 2 * i, 2), C_GELU, C_GELU))
            for i in range(8):
                A('v_pk_mul_f32 %s, %s, %s' % (vr(e + 2 * i, 2), vr(e + 2 * i, 2), vr(xs[i], 2)))
            for i in range(16):
                A('v_exp_f32 v%d, v%d' % (e + i, e + i))
            for i in range(8):
                A('v_pk_add_f32 %s, %s, 1.0 op_sel_hi:[1,0]' % (vr(e + 2 * i, 2), vr(e + 2 * i, 2)))
            for i in range(16):
                A('v_rcp_f32 v%d, v%d' % (e + i, e + i))
            for i in range(8):
                A('v_pk_mul_f32 %s, %s, %s' % (vr(xs[i], 2), vr(xs[i], 2), vr(e + 2 * i, 2)))
            hp = HP + 8 * c
            for i in range(8):
                A('v_cvt_pk_bf16_f32 v%d, v%d, v%d' % (hp + i, xs[i], xs[i] + 1))
            self.pairswap(hp)
            self.pairswap(hp + 4)
            A('s_add_u32 %s, %s, %d' % (T0, W, 4 * c))
            A('s_cmp_lt_u32 %s, %s' % (T0, NT))
            A('s_cselect_b32 %s, %s, %d' % (T1, sQx[0], BIG))
            A('s_add_u32 %s, %s, %s' % (T0, T0, TILE0))
            A('s_lshl_b32 %s, %s, 10' % (T0, T0))
            A('s_add_u32 %s, %s, %s' % (T0, T0, T1))
            A('s_lshr_b32 %s, %s, 1' % (T1, W))
            A('s_mul_i32 %s, %s, %d' % (T1, T1, 86 * 1024))
            A('s_add_u32 %s, %s, %s' % (sQo[0], T0, T1))
            A('s_sub_u32 %s, %d, %s' % (T1, 86 * 1024, T1))
            A('s_add_u32 %s, %s, %s' % (sQo[1], T0, T1))
            self.stores(['buffer_store_dwordx4 %s, v%d, %s, %s offen' % (vr(hp, 4), vHHst, sWS, sQo[0]),
                         'buffer_store_dwordx4 %s, v%d, %s, %s offen' % (vr(hp + 4, 4), vHHst, sWS, sQo[1])])
        self.stamp('gelu')
        A.wait_all()
        self.barrier()
        self.set_flag(96)
        self.stamp('pubhh')
        for p in range(11, 22):
            for r in self.w2_tr(p):
                A(r)

    def phaseD(self):
        A = self.A
        M = 'v_mfma_f32_32x32x16_bf16 %s, %s, %s, %s'
        HRES = XRES
        wa = [52, 53, 54, 55]
        ra = [56, 57, 58, 59]
        A('v_and_b32 v60, 31, %s' % vL)
        A('v_lshrrev_b32 v61, 5, %s' % vL)
        A('v_and_b32 v62, 7, %s' % vL)
        A('s_add_u32 %s, %s, 6144' % (T0, T4))
        for b in range(4):
            A('v_add_u32 v63, %d, v61' % (2 * b))
            A('v_xor_b32 v63, v63, v62')
            A('v_lshlrev_b32 v63, 4, v63')
            A('v_lshl_add_u32 v63, v60, 8, v63')
            A('v_add_u32 v%d, %s, v63' % (wa[b], T0))
        A('v_lshrrev_b32 v61, 3, %s' % vL)
        A('v_lshlrev_b32 v63, 1, v62')
        A('v_xor_b32 v63, v63, v61')
        A('v_lshlrev_b32 v63, 4, v63')
        A('v_lshl_add_u32 v63, v61, 8, v63')
        A('s_lshl_b32 %s, %s, 11' % (T0, W))
        A('s_add_u32 %s, %s, %d' % (T0, T0, RING + 6144))
        A('v_add_u32 v%d, %s, v63' % (ra[0], T0))
        A('v_xor_b32 v%d, 16, v%d' % (ra[1], ra[0]))
        A('v_add_u32 v%d, %d, v%d' % (ra[2], 2 * 22528, ra[0]))
        A('v_add_u32 v%d, %d, v%d' % (ra[3], 2 * 22528, ra[1]))
        A('v_lshlrev_b32 v63, 4, v62')
        A('v_lshl_add_u32 v63, v61, 10, v63')
        A('s_lshl_b32 %s, %s, 16' % (T0, G))
        A('s_lshl_b32 %s, %s, 13' % (T1, W))
        A('s_add_u32 %s, %s, %s' % (T0, T0, T1))
        A('s_lshl_b32 %s, %s, 7' % (T1, J))
        A('s_add_u32 %s, %s, %s' % (T0, T0, T1))
        A('v_add_u32 v60, %s, v63' % T0)
        A('s_add_u32 %s, %s, %d' % (sQo[2], sQx[0], 86 * 1024))
        self.wait_flags(96)
        self.stamp('gotHH')
        hb = [64, 152]
        for T in range(2):
            A('s_mov_b32 %s, %s' % (T2, sQx[1]))
            for p in range(22):
                A('s_cmp_lt_u32 %s, %s' % (T2, sQo[2]))
                A('s_cselect_b32 %s, %s, %d' % (T0, T2, BIG))
                if T:
                    A('s_add_u32 %s, %s, %d' % (T0, T0, 86 * 1024))
                A('buffer_load_dwordx4 %s, v%d, %s, %s offen sc1' % (vr(hb[T] + 4 * p, 4), vL16, sWS, T0))
                A('s_add_u32 %s, %s, 1024' % (T2, T2))
                A('s_cmp_eq_u32 %s, %s' % (T2, sQx[3]))
                A('s_cselect_b32 %s, %s, %s' % (T2, sQx[2], T2))
        acc = [176, 208]
        B2F = 240
        for i in range(4):
            A('v_lshlrev_b32 v%d, 16, v%d' % (B2F + 2 * i, B2P + i))
            A('v_and_b32 v%d, %s, v%d' % (B2F + 2 * i + 1, HI16, B2P + i))

        def writes(T):
            return ['ds_write_b128 v%d, %s offset:%d' % (wa[b], ar(acc[T] + 16 * ct + 4 * b, 4), T * 8192 + ct * 128)
                    for ct in range(2) for b in range(4)]

        def finish(T, buf):
            for src in range(4):
                for k in range(2):
                    A('ds_read_b128 %s, v%d offset:%d' % (vr(buf + 8 * src + 4 * k, 4), ra[2 * (src >> 1) + k],
                                                          (src & 1) * 22528 + T * 8192))
            hf = buf + 32
            for i in range(4):
                A('v_lshlrev_b32 v%d, 16, v%d' % (hf + 2 * i, HRES + 4 * T + i))
                A('v_and_b32 v%d, %s, v%d' % (hf + 2 * i + 1, HI16, HRES + 4 * T + i))
            for i in range(4):
                A('v_pk_add_f32 %s, %s, %s' % (vr(hf + 2 * i, 2), vr(hf + 2 * i, 2), vr(B2F + 2 * i, 2)))
            for src in range(4):
                for i in range(4):
                    A('v_pk_add_f32 %s, %s, %s' % (vr(hf + 2 * i, 2), vr(hf + 2 * i, 2), vr(buf + 8 * src + 2 * i, 2)))
            for i in range(4):
                A('v_cvt_pk_bf16_f32 v%d, v%d, v%d' % (buf + i, hf + 2 * i, hf + 2 * i + 1))
            if T:
                A('v_add_u32 v61, 0x8000, v60')
            A('buffer_store_dwordx4 %s, v%d, %s, 0 offen' % (vr(buf, 4), 60 + T, sOUT))

        for T in range(2):
            wr = writes(0) if T else []
            for p in range(22):
                for ct in range(2):
                    d = ar(acc[T] + 16 * ct, 16)
                    A(M % (d, ar(p * 8 + 4 * ct, 4), vr(hb[T] + 4 * p, 4), '0' if p == 0 else d))
                if T and p >= 1 and wr:
                    A(wr.pop(0))
            self.stamp('D%d' % T)
        for w in writes(1):
            A(w)
        A.wait_lg()
        self.barrier()
        finish(0, 64)
        finish(1, 112)
        self.stamp('end')
        if self.stamps:
            A('s_lshl_b32 %s, s2, 10' % T0)
            A('s_add_u32 %s, %s, %d' % (T0, T0, STAMP_OFF))
            A('v_lshlrev_b32 v50, 2, v0')
            A('buffer_store_dword v%d, v50, %s, %s offen' % (VSTAMP, sWS, T0))

    def build(self):
        A = self.A
        self.prologue()
        self.phaseA()
        self.phaseB()
        self.phaseC()
        self.phaseD()
        A.label('L_end')
        A.raw('    s_endpgm')
        A.label('L_code_end')
        ref = open('cdna_kernels/%s.s.ref' % NAME).read().split('\n')
        head = [l for l in ref if l.startswith(';') and '@launch' not in l and 'Override' not in l and 'grid=ceil' not in l]
        out = '\n'.join(head) + '\n; @launch grid=(256,1,1) block=(256,1,1) lds=%d\n' % LDS_BYTES
        out += '.amdgcn_target "amdgcn-amd-amdhsa--gfx950"\n.set CODE_BYTES, L_code_end - %s - 64\n' % KERN
        out += '.text\n.globl %s\n.p2align 8\n.type %s,@function\n%s:\n' % (KERN, KERN, KERN)
        out += A.text()
        out += '''.section .rodata,"a"
.p2align 6
.amdhsa_kernel %s
  .amdhsa_next_free_vgpr 512
  .amdhsa_next_free_sgpr 102
  .amdhsa_accum_offset 256
  .amdhsa_group_segment_fixed_size 0
  .amdhsa_kernarg_size 88
  .amdhsa_user_sgpr_count 2
  .amdhsa_user_sgpr_kernarg_segment_ptr 1
  .amdhsa_system_sgpr_workgroup_id_x 1
.end_amdhsa_kernel
''' % KERN
        return out


if __name__ == '__main__':
    stamps = '--stamps' in sys.argv
    fast = '--fast' in sys.argv
    outp = [a for a in sys.argv[1:] if not a.startswith('--')]
    g = Gen(stamps, fast)
    txt = g.build()
    path = outp[0] if outp else 'cdna_kernels/%s.s' % NAME
    open(path, 'w').write(txt)
    if stamps:
        open(path + '.names', 'w').write('\n'.join(g.stnames))
    print('instructions', g.A.count, 'nop states', g.A.nops, file=sys.stderr)
```

```python
import sys, math, struct
from asmlib import Asm

NAME = 'sequential_preLN__linear_attn_block__mixer_channel_mlp__prompt'
KERN = NAME + '_kernel'

KV_OFF = 0x0
Z_OFF = 0x80000
SY_OFF = 0x90000
H_OFF = 0x100000
O_OFF = 0x300000
HH_OFF = 0x500000
HH_G = 2 * 86 * 1024
WS_USE = HH_OFF + 32 * HH_G
STAMP_OFF = 0xB00000
BIG = 0x40000000

RING = 65536
NSLOT = 22
MISC = RING + NSLOT * 4096
LDS_BYTES = 163840


def f32(x):
    return '0x%08x' % struct.unpack('<I', struct.pack('<f', x))[0]


def vr(b, n):
    return 'v[%d:%d]' % (b, b + n - 1) if n > 1 else 'v%d' % b


def ar(b, n):
    return 'a[%d:%d]' % (b, b + n - 1) if n > 1 else 'a%d' % b


sX, sWQ, sWO, sW1, sW2, sOUT, sWS, sB1, sB2, sDBG, sCODE = [
    's[%d:%d]' % (b, b + 3) for b in (28, 32, 36, 40, 44, 48, 52, 56, 60, 64, 68)]
G, J, W, AQ, WL, T0, T1, SPIN = ['s%d' % i for i in range(72, 80)]
sQq = ['s%d' % i for i in range(80, 84)]
sQx = ['s%d' % i for i in range(84, 88)]
sQo = ['s%d' % i for i in range(88, 92)]
sQ1 = ['s%d' % i for i in range(92, 96)]
sQi = ['s%d' % i for i in range(96, 100)]
C_E6, C_L2E, C_GELU = 's[4:5]', 's[6:7]', 's[8:9]'
FAST, SYB, HEAD, NT = 's10', 's11', 's14', 's15'
EXS = 's[12:13]'
T2, T3, T4, T5 = 's16', 's17', 's18', 's19'
DBGP = 's[22:23]'
TILE0 = 's26'
HI16 = 's27'

vL = 'v1'
vA = [2, 3, 4, 5]
vH = [6, 7, 8, 9]
vTrA, vTrB = 10, 11
vXg, vWq, vWo, vW1, vW1m, vLin, vOst0, vOst1, vHHst, vW2g, vT32, vL16 = range(12, 24)
ONES, SEL, XRES, B1P, B2P = 24, 28, 32, 40, 46
VSTAMP = 255


class Gen:
    def __init__(self, stamps=False, fast=False):
        self.A = Asm()
        self.stamps = stamps
        self.fast = fast
        self.nst = 0
        self.stnames = []
        self.lab = 0

    def stamp(self, name):
        if not self.stamps:
            return
        if self.stamps == 2 and name not in ('args', 'issued', 'A0', 'Akv', 'pubkv', 'Aq', 'gath', 'pubo', 'gotO', 'pubh', 'gotH', 'C1', 'C2', 'pubhh', 'gotHH', 'end'):
            return
        A = self.A
        A.wait_lg()
        A('s_memtime s[100:101]')
        A.wait_lg()
        A('v_writelane_b32 v%d, s100, %d' % (VSTAMP, self.nst))
        self.stnames.append(name)
        self.nst += 1

    def newlab(self, p):
        self.lab += 1
        return 'L_%s%d' % (p, self.lab)

    def inter(self, mf, fill, per=2):
        A = self.A
        fill = list(fill)
        for m in mf:
            A(m)
            for _ in range(per):
                if fill:
                    self.run(fill.pop(0))
        for f in fill:
            self.run(f)

    def run(self, f):
        if callable(f):
            return f()
        return self.A(f)

    def slot_addr(self, slot, extra=0):
        off = slot * 4096 + extra
        return (vTrA, off) if off < 65536 else (vTrB, off - 65536)

    def dma_unit(self, srd, vaddr, sbase, const, slot, flags=''):
        def go():
            A = self.A
            A('s_add_u32 m0, %s, %d' % (WL, slot))
            A('s_add_u32 %s, %s, %d' % (T0, sbase, const))
            go.seq = A('buffer_load_dwordx4 v%d, %s, %s offen %slds' % (vaddr, srd, T0, flags))
            return go.seq
        go.seq = None
        return go

    def u_qkv(self, blk, s, slot):
        return self.dma_unit(sWQ, vWq, sQq[s >> 2], (s & 3) * 32 * 3072 + blk * 1024, RING + slot * 4096)

    def u_wo(self, s, slot):
        return self.dma_unit(sWO, vWo, sQo[s >> 2], (s & 3) * 32 * 1024, RING + slot * 4096)

    def u_w1(self, b, s, slot):
        return self.dma_unit(sW1, vW1m if b == 2 else vW1, sQ1[s >> 2], (s & 3) * 32 * 2752 + b * 128,
                             RING + slot * 4096)

    def u_x(self, s):
        return self.dma_unit(sX, vXg, sQx[s >> 2], (s & 3) * 64, s * 4096)

    def u_img(self, base, s):
        return self.dma_unit(sWS, vLin, sQi[s >> 2], base + (s & 3) * 4096, s * 4096, 'sc1 ')

    def tr16(self, dst, slot):
        out = []
        for kq in range(2):
            r, off = self.slot_addr(slot, kq * 512)
            out.append('ds_read_b64_tr_b16 %s[%d:%d], v%d offset:%d' % (dst[0], dst[1] + 2 * kq, dst[1] + 2 * kq + 1, r, off))
        return out

    def areads(self, addr, dst, s):
        return ['ds_read_b128 %s, v%d offset:%d' % (vr(dst + 4 * t, 4), addr[t], s * 4096) for t in range(4)]

    def barrier(self):
        self.A('s_barrier')

    def store(self, text):
        self.A(text + ' sc1')

    def stores(self, lst):
        A = self.A
        if not self.fast:
            seq = None
            for t in lst:
                seq = A(t + ' sc1')
            return seq
        l1, l2 = self.newlab('sl'), self.newlab('sd')
        A('s_cmp_lg_u32 %s, 0' % FAST)
        for t in lst:
            pass
        A.fence()
        A('s_cbranch_scc1 %s' % l1)
        seq = None
        for t in lst:
            seq = A(t + ' sc1')
        A('s_branch %s' % l2)
        A.label(l1)
        for t in lst:
            A.raw('    ' + t)
        A.label(l2)
        return seq

    def spin_tail(self, lab):
        A = self.A
        A('s_cbranch_vccz %s_x' % lab)
        A('s_add_u32 %s, %s, 1' % (SPIN, SPIN))
        A('s_cmp_lt_u32 %s, 0x200000' % SPIN)
        A('s_cbranch_scc1 %s' % lab)
        A.label(lab + '_x')

    def set_flag(self, off):
        A = self.A
        l = self.newlab('fl')
        A('s_cmp_lg_u32 %s, 0' % W)
        A('s_cbranch_scc1 %s' % l)
        A('s_lshl_b32 %s, %s, 2' % (T0, J))
        A('s_add_u32 %s, %s, %s' % (T0, T0, SYB))
        A('v_mov_b32 v50, 1')
        A('s_mov_b64 %s, exec' % EXS)
        A('s_mov_b64 exec, 1')
        t = 'buffer_store_dword v50, off, %s, %s offset:%d' % (sWS, T0, off)
        if self.fast:
            l1, l2 = self.newlab('f1'), self.newlab('f2')
            A('s_cmp_lg_u32 %s, 0' % FAST)
            A('s_cbranch_scc1 %s' % l1)
            A.raw('    ' + t + ' sc1')
            A('s_branch %s' % l2)
            A.label(l1)
            A.raw('    ' + t)
            A.label(l2)
        else:
            A.raw('    ' + t + ' sc1')
        A('s_mov_b64 exec, %s' % EXS)
        A.label(l)

    def wait_flags(self, off):
        A = self.A
        lab = self.newlab('pw')
        A('v_and_b32 v50, 7, %s' % vL)
        A('v_lshlrev_b32 v50, 2, v50')
        A.wait_all()
        A.fence()
        A.label(lab)
        A('buffer_load_dword v51, v50, %s, %s offen offset:%d sc1' % (sWS, SYB, off))
        A.force_wait('vmcnt(0)')
        A('v_cmp_ne_u32 vcc, 1, v51')
        self.spin_tail(lab)

    def rbf2(self, dlo, dhi, a, b, tmp):
        A = self.A
        A('v_cvt_pk_bf16_f32 v%d, v%d, v%d' % (tmp, a, b))
        if dhi is not None:
            A('v_and_b32 v%d, %s, v%d' % (dhi, HI16, tmp))
        A('v_lshlrev_b32 v%d, 16, v%d' % (dlo, tmp))

    def stats(self, SUM, GRAM, t, double):
        A = self.A
        q, mu, var, m, v, s, rs, x, y, a, b, ad = range(t, t + 12)
        A('v_and_b32 v%d, 1, %s' % (x, vL))
        A('v_cmp_eq_u32 vcc, 1, v%d' % x)
        A('v_cndmask_b32 v%d, v%d, v%d, vcc' % (q, GRAM, GRAM + 1))
        A('v_cndmask_b32 v%d, v%d, v%d, vcc' % (y, GRAM + 2, GRAM + 3))
        A('v_and_b32 v%d, 2, %s' % (x, vL))
        A('v_cmp_eq_u32 vcc, 2, v%d' % x)
        A('v_mul_f32 v%d, %s, v%d' % (mu, f32(1.0 / 512), SUM))
        A('v_cndmask_b32 v%d, v%d, v%d, vcc' % (q, q, y))
        A('v_mul_f32 v%d, v%d, v%d' % (x, mu, mu))
        A('v_mul_f32 v%d, %s, v%d' % (q, f32(1.0 / 512), q))
        A('v_sub_f32 v%d, v%d, v%d' % (var, q, x))
        A('v_max_f32 v%d, 0, v%d' % (var, var))
        self.rbf2(m, v, mu, var, x)
        A('v_add_f32 v%d, %s, v%d' % (v, f32(1e-5), v))
        self.rbf2(v, None, v, v, x)
        A('v_sqrt_f32 v%d, v%d' % (s, v))
        self.rbf2(s, None, s, s, x)
        A('v_rcp_f32 v%d, v%d' % (rs, s))
        if not double:
            A('v_mov_b32 v%d, v%d' % (a, rs))
            A('v_mul_f32_e64 v%d, -v%d, v%d' % (b, m, rs))
        else:
            A('v_sub_f32 v%d, v%d, v%d' % (x, mu, m))
            A('v_mul_f32 v%d, v%d, v%d' % (y, var, rs))
            A('v_mul_f32 v%d, v%d, v%d' % (x, x, rs))
            A('v_mul_f32 v%d, v%d, v%d' % (y, y, rs))
            self.rbf2(x, y, x, y, q)
            A('v_add_f32 v%d, %s, v%d' % (y, f32(1e-5), y))
            self.rbf2(y, None, y, y, q)
            A('v_sqrt_f32 v%d, v%d' % (y, y))
            self.rbf2(y, None, y, y, q)
            A('v_rcp_f32 v%d, v%d' % (y, y))
            A('v_fmac_f32 v%d, v%d, v%d' % (x, m, rs))
            A('v_mul_f32 v%d, v%d, v%d' % (a, rs, y))
            A('v_mul_f32_e64 v%d, -v%d, v%d' % (b, x, y))
        A('v_bfe_u32 v%d, %s, 2, 2' % (x, vL))
        A('v_lshrrev_b32 v%d, 4, %s' % (y, vL))
        A('v_cmp_eq_u32 vcc, v%d, v%d' % (x, y))
        A('v_and_b32 v%d, 15, %s' % (ad, vL))
        A('s_lshl_b32 %s, %s, 6' % (T0, W))
        A('s_add_u32 %s, %s, %d' % (T0, T0, MISC))
        A('v_lshl_add_u32 v%d, v%d, 2, %s' % (ad, ad, T0))
        A('s_and_saveexec_b64 %s, vcc' % EXS)
        A('ds_write_b32 v%d, v%d' % (ad, a))
        A('ds_write_b32 v%d, v%d offset:256' % (ad, b))
        A('s_mov_b64 exec, %s' % EXS)

    def read_ab_T(self, dst, tmp):
        A = self.A
        A('v_and_b32 v%d, 15, %s' % (tmp, vL))
        A('v_lshlrev_b32 v%d, 2, v%d' % (tmp, tmp))
        for t in range(4):
            A('s_xor_b32 %s, %s, %d' % (T0, W, t))
            A('s_lshl_b32 %s, %s, 6' % (T0, T0))
            A('s_add_u32 %s, %s, %d' % (T0, T0, MISC))
            A('v_add_u32 v%d, %s, v%d' % (tmp + 1 + t, T0, tmp))
            A('ds_read2_b32 %s, v%d offset0:0 offset1:64' % (vr(dst + 2 * t, 2), tmp + 1 + t))

    def phi_pairs(self, pairs):
        A = self.A
        for d, x, t in pairs:
            A('v_pk_mul_f32 %s, %s, %s' % (vr(t, 2), vr(x, 2), C_L2E))
        for d, x, t in pairs:
            A('v_exp_f32_e64 v%d, v%d clamp' % (t, t))
            A('v_exp_f32_e64 v%d, v%d clamp' % (t + 1, t + 1))
        for d, x, t in pairs:
            A('v_max_f32 v%d, s4, v%d' % (x, x))
            A('v_max_f32 v%d, s4, v%d' % (x + 1, x + 1))
        for d, x, t in pairs:
            A('v_pk_add_f32 %s, %s, %s' % (vr(x, 2), vr(x, 2), vr(t, 2)))
        for d, x, t in pairs:
            A('v_cvt_pk_bf16_f32 v%d, v%d, v%d' % (d, x, x + 1))

    def pairswap(self, p):
        A = self.A
        A('v_permlane16_swap_b32 v%d, v%d' % (p, p + 2))
        A('v_permlane16_swap_b32 v%d, v%d' % (p + 1, p + 3))

    def prologue(self):
        A = self.A
        A('s_cmp_ge_u32 s2, 256')
        A('s_cbranch_scc1 L_end')
        A('s_load_dwordx16 s[4:19], s[0:1], 0')
        A('s_load_dwordx4 s[20:23], s[0:1], 64')
        A('s_load_dwordx2 s[24:25], s[0:1], 80')
        if self.stamps:
            A('s_memrealtime s[100:101]')
        A('s_getpc_b64 s[68:69]')
        A('s_mov_b32 s70, CODE_BYTES')
        A('s_mov_b32 s71, 0x20000')
        A('v_and_b32 %s, 63, v0' % vL)
        A('v_lshrrev_b32 v50, 6, v0')
        A('s_lshr_b32 %s, s2, 3' % T0)
        A('s_and_b32 %s, %s, 15' % (T0, T0))
        A('s_lshl_b32 %s, %s, 11' % (T0, T0))
        A('v_lshlrev_b32 v51, 7, v0')
        A('v_cmp_gt_u32 vcc, 16, v0')
        A('v_readfirstlane_b32 %s, v50' % W)
        A('v_mov_b32 v52, %d' % BIG)
        A('v_cndmask_b32 v51, v52, v51, vcc')
        A('buffer_load_dword v254, v51, %s, %s offen' % (sCODE, T0))
        A('s_and_b32 %s, s2, 31' % G)
        A('s_lshr_b32 %s, s2, 5' % J)
        A('s_lshr_b32 %s, %s, 3' % (AQ, G))
        A('s_lshl_b32 %s, %s, 10' % (WL, W))
        A('s_mov_b32 %s, 0' % SPIN)
        A('v_lshrrev_b32 v54, 2, %s' % vL)
        A('v_lshrrev_b32 v55, 5, %s' % vL)
        A('v_mul_u32_u24 v55, 3, v55')
        A('v_and_b32 v56, 3, %s' % vL)
        A('v_xor_b32 v55, v55, v56')
        A('v_lshlrev_b32 v55, 4, v55')
        A('v_lshl_add_u32 v55, v54, 10, v55')
        A('s_lshl_b32 %s, %s, 14' % (T0, W))
        A('v_add_u32 v%d, %s, v55' % (vXg, T0))
        A('v_lshrrev_b32 v57, 5, %s' % vL)
        A('v_bfe_u32 v58, %s, 2, 2' % vL)
        A('v_lshl_add_u32 v57, v57, 2, v58')
        A('s_lshl_b32 %s, %s, 3' % (T0, W))
        A('v_add_u32 v59, %s, v57' % T0)
        A('s_and_b32 %s, %s, 1' % (T0, W))
        A('s_lshl_b32 %s, %s, 1' % (T0, T0))
        A('v_xor_b32 v60, %s, v56' % T0)
        A('v_bfe_u32 v61, %s, 4, 1' % vL)
        A('v_lshlrev_b32 v62, 6, v61')
        A('v_lshl_add_u32 v60, v60, 4, v62')
        A('s_movk_i32 %s, 3072' % T0)
        A('v_mad_u32_u24 v%d, v59, %s, v60' % (vWq, T0))
        for t in range(4):
            A('s_add_u32 %s, %s, %d' % (T0, AQ, t))
            A('s_and_b32 %s, %s, 3' % (T0, T0))
            A('s_mul_i32 %s, %s, %d' % (sQq[t], T0, 128 * 3072))
            A('s_lshl_b32 %s, %s, 8' % (sQx[t], T0))
            A('s_lshl_b32 %s, %s, 17' % (sQo[t], T0))
            A('s_mul_i32 %s, %s, %d' % (sQ1[t], T0, 128 * 2752))
            A('s_lshl_b32 %s, %s, 14' % (sQi[t], T0))
        A('s_lshl_b32 %s, %s, 7' % (T0, J))
        A('s_lshl_b32 %s, %s, 16' % (T1, G))
        for t in range(4):
            A('s_add_u32 %s, %s, %s' % (sQq[t], sQq[t], T0))
            A('s_add_u32 %s, %s, %s' % (sQx[t], sQx[t], T1))
            A('s_add_u32 %s, %s, %s' % (sQo[t], sQo[t], T0))
            A('s_add_u32 %s, %s, %s' % (sQi[t], sQi[t], T1))
        A.wait_lg()
        if self.stamps:
            A('v_writelane_b32 v%d, s100, 63' % VSTAMP)
        for srd, p, size in ((28, 4, 2097152), (32, 6, 1572864), (52, 24, STAMP_OFF + 0x100000 if self.stamps else WS_USE)):
            A('s_mov_b32 s%d, s%d' % (srd, p))
            A('s_mov_b32 s%d, s%d' % (srd + 1, p + 1))
            A('s_mov_b32 s%d, %d' % (srd + 2, size))
            A('s_mov_b32 s%d, 0x20000' % (srd + 3))
        self.stamp('args')
        A('v_lshlrev_b32 v63, 10, v0')
        A('v_cmp_gt_u32 vcc, 64, v0')
        A('s_add_u32 %s, %s, %s' % (T0, T0, T1))
        A('v_cndmask_b32 v63, v52, v63, vcc')
        A('buffer_load_dword v253, v63, %s, %s offen' % (sX, T0))
        self.KV = {}
        self.X = {}
        for s in range(11):
            self.KV[s] = (self.u_qkv(1, s, 2 * s), self.u_qkv(2, s, 2 * s + 1))
        for s in range(16):
            self.X[s] = self.u_x(s)
        for s in range(4):
            self.KV[s][0]()
            self.KV[s][1]()
        for srd, p, size in ((36, 8, 524288), (40, 12, 1409024), (44, 16, 1409024), (48, 20, 2097152),
                             (56, 14, 2752), (60, 18, 1024), (64, 22, 256)):
            A('s_mov_b32 s%d, s%d' % (srd, p))
            A('s_mov_b32 s%d, s%d' % (srd + 1, p + 1))
            A('s_mov_b32 s%d, %d' % (srd + 2, size))
            A('s_mov_b32 s%d, 0x20000' % (srd + 3))
        A('s_mul_i32 %s, %s, 11' % (TILE0, J))
        A('s_and_b32 %s, %s, 1' % (T0, J))
        A('s_add_u32 %s, %s, %s' % (TILE0, TILE0, T0))
        A('s_min_u32 %s, %s, 76' % (TILE0, TILE0))
        A('s_cmp_ge_u32 %s, 6' % J)
        A('s_cselect_b32 %s, 1, %s' % (T0, T0))
        A('s_cmp_eq_u32 %s, 0' % T0)
        A('s_cselect_b32 %s, 12, 10' % NT)
        A('v_lshrrev_b32 v64, 4, %s' % vL)
        A('v_lshlrev_b32 v65, 3, v64')
        A('s_add_u32 %s, %s, %s' % (T0, TILE0, W))
        A('s_lshl_b32 %s, %s, 5' % (T0, T0))
        for c in range(3):
            A('buffer_load_dwordx2 %s, v65, %s, %s offen offset:%d' % (vr(B1P + 2 * c, 2), sB1, T0, c * 128))
        A('v_and_b32 v66, 7, %s' % vL)
        A('v_lshlrev_b32 v66, 4, v66')
        A('s_lshl_b32 %s, %s, 7' % (T0, J))
        A('buffer_load_dwordx4 %s, v66, %s, %s offen' % (vr(B2P, 4), sB2, T0))
        A('s_lshl_b32 %s, %s, 8' % (SYB, G))
        A('s_add_u32 %s, %s, %d' % (SYB, SYB, SY_OFF))
        A('v_lshlrev_b32 v%d, 4, %s' % (vL16, vL))
        A('v_add_u32 v%d, %s, v%d' % (vLin, WL, vL16))
        for r in range(4):
            A('v_mov_b32 v%d, -1' % (68 + r))
            A('v_mov_b32 v%d, 0' % (72 + r))
        A('v_cmp_gt_u32 vcc, 128, v0')
        A('v_cndmask_b32 v76, v52, v%d, vcc' % vLin)
        A('v_cmp_gt_u32 vcc, 8, v0')
        A('v_cndmask_b32 v77, v52, v%d, vcc' % vLin)
        A('s_mul_i32 %s, %s, 18432' % (T0, G))
        A.fence()
        A('s_cmp_lg_u32 %s, 0' % J)
        A('s_cbranch_scc1 L_noinit')
        for i in range(5):
            A.raw('    buffer_store_dwordx4 v[68:71], v%d, %s, %s offen sc1' % (vLin if i < 4 else 76, sWS, T0))
            A.raw('    s_add_u32 %s, %s, 4096' % (T0, T0))
        A.raw('    buffer_store_dwordx4 v[72:75], v77, %s, %s offen sc1' % (sWS, SYB))
        A.label('L_noinit')
        for s in range(4):
            self.X[s]()
        for s in range(4, 8):
            self.KV[s][0]()
            self.KV[s][1]()
        for s in range(4, 8):
            self.X[s]()
        for s in range(8, 11):
            self.KV[s][0]()
            self.KV[s][1]()
        for s in range(8, 16):
            self.X[s]()
        self.stamp('issued')
        A('s_mov_b32 s4, %s' % f32(1e-6))
        A('s_mov_b32 s5, %s' % f32(1e-6))
        A('s_mov_b32 s6, %s' % f32(math.log2(math.e)))
        A('s_mov_b32 s7, %s' % f32(math.log2(math.e)))
        c0 = -2.0 * math.sqrt(2.0 / math.pi) * math.log2(math.e)
        A('s_mov_b32 s8, %s' % f32(c0 * 0.044715))
        A('s_mov_b32 s9, %s' % f32(c0))
        A('s_mov_b32 %s, 0xffff0000' % HI16)
        A('s_mov_b32 %s, 0' % FAST)
        A('s_lshl_b32 %s, %s, 2' % (HEAD, J))
        A('s_add_u32 %s, %s, %s' % (HEAD, HEAD, W))
        A('s_lshl_b32 %s, %s, 5' % (T0, TILE0))
        for t in range(4):
            A('s_add_u32 %s, %s, %s' % (sQ1[t], sQ1[t], T0))
        A('v_lshl_add_u32 v%d, v59, 10, v60' % vWo)
        A('s_movk_i32 %s, 2752' % T0)
        A('v_mad_u32_u24 v%d, v59, %s, v60' % (vW1, T0))
        A('s_cmp_eq_u32 %s, 10' % NT)
        A('s_cselect_b32 %s, %d, 0' % (T0, BIG))
        A('v_mul_lo_u32 v62, v61, %s' % T0)
        A('v_add_u32 v%d, v62, v%d' % (vW1m, vW1))
        A('v_lshlrev_b32 v62, 6, v61')
        A('v_lshl_add_u32 v62, v56, 4, v62')
        A('v_lshl_add_u32 v%d, v57, 10, v62' % vW2g)
        A('v_and_b32 v67, 15, %s' % vL)
        A('v_lshrrev_b32 v68, 3, v67')
        A('v_mul_u32_u24 v68, 3, v68')
        A('v_xor_b32 v68, v68, v64')
        A('v_lshlrev_b32 v68, 4, v68')
        A('v_lshl_add_u32 v68, v67, 6, v68')
        for t in range(4):
            A('s_xor_b32 %s, %s, %d' % (T0, W, t))
            A('s_lshl_b32 %s, %s, 10' % (T0, T0))
            A('v_add_u32 v%d, %s, v68' % (vA[t], T0))
            A('v_add_u32 v%d, %s, v%d' % (vH[t], T0, vL16))
        A('v_and_b32 v69, 1, v64')
        A('s_and_b32 %s, %s, 1' % (T0, W))
        A('v_xor_b32 v70, %s, v69' % T0)
        A('v_lshlrev_b32 v71, 5, v70')
        A('v_lshl_add_u32 v71, v64, 10, v71')
        A('v_lshl_add_u32 v71, v58, 6, v71')
        A('v_lshl_add_u32 v71, v56, 3, v71')
        A('s_lshr_b32 %s, %s, 1' % (T1, W))
        A('s_lshl_b32 %s, %s, 8' % (T1, T1))
        A('s_add_u32 %s, %s, %d' % (T1, T1, RING))
        A('v_add_u32 v%d, %s, v71' % (vTrA, T1))
        A('v_add_u32 v%d, 0x10000, v%d' % (vTrB, vTrA))
        A('v_lshrrev_b32 v72, 1, v64')
        A('v_xor_b32 v73, %s, v69' % W)
        A('v_lshlrev_b32 v73, 10, v73')
        A('v_lshl_add_u32 v73, v72, 8, v73')
        A('v_lshl_add_u32 v73, v67, 4, v73')
        A('s_lshl_b32 %s, %s, 9' % (T0, T0))
        A('s_lshr_b32 %s, %s, 1' % (T1, HEAD))
        A('s_lshl_b32 %s, %s, 12' % (T1, T1))
        A('s_add_u32 %s, %s, %s' % (T0, T0, T1))
        A('s_lshl_b32 %s, %s, 16' % (T1, G))
        A('s_add_u32 %s, %s, %s' % (T0, T0, T1))
        A('v_add_u32 v%d, %s, v73' % (vOst0, T0))
        A('v_xor_b32 v%d, 0x800, v%d' % (vOst1, vOst0))
        A('v_lshlrev_b32 v74, 9, v72')
        A('v_lshl_add_u32 v74, v70, 8, v74')
        A('v_lshl_add_u32 v%d, v67, 4, v74' % vHHst)
        A('v_lshrrev_b32 v74, 5, %s' % vL)
        A('v_lshlrev_b32 v74, 10, v74')
        A('v_lshl_add_u32 v74, v61, 5, v74')
        A('v_lshl_add_u32 v74, v58, 6, v74')
        A('v_lshl_add_u32 v%d, v56, 3, v74' % vT32)
        for r in range(4):
            A('v_mov_b32 v%d, 0x3f803f80' % (ONES + r))
        A('v_lshlrev_b32 v75, 3, v69')
        A('v_sub_u32 v75, v67, v75')
        A('v_and_b32 v76, 1, v75')
        A('v_lshlrev_b32 v76, 4, v76')
        A('s_movk_i32 %s, 0x3f80' % T0)
        A('v_lshlrev_b32_e64 v76, v76, %s' % T0)
        A('v_ashrrev_i32 v75, 1, v75')
        for r in range(4):
            A('v_cmp_eq_u32 vcc, %d, v75' % r)
            A('v_cndmask_b32 v%d, 0, v76, vcc' % (SEL + r))

    def phaseA(self):
        A = self.A
        accK, accV, csK, csV, SUM, GRAM = 52, 68, 84, 88, 92, 96
        fa = [100, 124]
        kslot = {s: 2 * s for s in range(11)}
        kslot.update({11: 0, 12: 2, 13: 4, 14: 6, 15: 8})
        for s in range(11, 16):
            self.KV[s] = (self.u_qkv(1, s, kslot[s]), self.u_qkv(2, s, kslot[s] + 1))
        qslot = [10, 11, 12, 13, 14, 15, 16, 17, 18, 19, 20, 21, 0, 1, 2, 3]
        Q = [self.u_qkv(0, s, qslot[s]) for s in range(16)]
        self.oslot = list(range(4, 20))
        self.O = [self.u_wo(s, self.oslot[s]) for s in range(16)]
        self.w1slot = {}
        self.W1 = {}
        for i, sl in enumerate([20, 21, 0, 1, 2, 3]):
            self.w1slot[(0, i)] = sl
            self.W1[(0, i)] = self.u_w1(0, i, sl)
        refill = {4: [u for s in range(11, 15) for u in self.KV[s]],
                  8: list(self.KV[15]) + Q[0:6],
                  12: Q[6:14]}

        def reads(s):
            b = fa[s & 1]
            return (self.tr16(('v', b + 16), kslot[s]) + self.areads(vA, b, s)[:1] + self.tr16(('v', b + 20), kslot[s] + 1)
                    + self.areads(vA, b, s)[1:])

        def mf(s):
            b = fa[s & 1]
            c = (lambda r: '0') if s == 0 else (lambda r: vr(r, 4))
            M = 'v_mfma_f32_16x16x32_bf16 %s, %s, %s, %s'
            wk, wv, one = vr(b + 16, 4), vr(b + 20, 4), vr(ONES, 4)
            out = [M % (vr(csK, 4), one, wk, c(csK)), M % (vr(accK, 4), vr(b, 4), wk, c(accK)),
                   M % (vr(SUM, 4), one, vr(b, 4), c(SUM)), M % (vr(GRAM, 4), vr(b, 4), vr(b, 4), c(GRAM)),
                   M % (vr(csV, 4), one, wv, c(csV)), M % (vr(accV, 4), vr(b, 4), wv, c(accV))]
            for t in range(1, 4):
                out.append(M % (vr(accK + 4 * t, 4), vr(b + 4 * t, 4), wk, c(accK + 4 * t)))
                out.append(M % (vr(accV + 4 * t, 4), vr(b + 4 * t, 4), wv, c(accV + 4 * t)))
            return out

        A.wait_vm(self.X[3].seq)
        self.barrier()
        A('s_or_b32 %s, %s, %s' % (T0, J, W))
        A('s_cmp_lg_u32 %s, 0' % T0)
        A('s_cbranch_scc1 L_noarr')
        A('v_mov_b32 v50, 1')
        A('s_mov_b64 %s, exec' % EXS)
        A('s_mov_b64 exec, 1')
        A.raw('    buffer_atomic_add v50, off, %s, 0' % sDBG)
        A('s_mov_b64 exec, %s' % EXS)
        A.label('L_noarr')
        self.stamp('A0')
        for r in reads(0):
            A(r)
        for s in range(16):
            fill = []
            if s + 1 < 16:
                if (s + 1) % 4 == 0:
                    A.wait_lg()
                    last = s + 4
                    A.wait_vm(max(self.X[last].seq, self.KV[last][1].seq or 0) if self.KV[last][1].seq else self.X[last].seq)
                    self.barrier()
                    self.stamp('A%d' % (s + 1))
                    fill += reads(s + 1) + refill[s + 1]
                else:
                    fill += reads(s + 1)
            self.inter(mf(s), fill)
        self.stamp('Akv')
        A('buffer_load_dword v200, off, %s, 0 sc1' % sDBG)
        self.stats(SUM, GRAM, 100, False)
        A.wait_lg()
        A.wait_vm(Q[7].seq)
        self.barrier()
        for u in Q[14:16] + self.O[0:6]:
            u()
        a4, b4, u0 = 148, 164, 112
        A('s_lshl_b32 %s, %s, 6' % (T0, W))
        A('v_lshrrev_b32 v100, 4, %s' % vL)
        A('v_lshlrev_b32 v100, 4, v100')
        for t in range(4):
            A('s_xor_b32 %s, %s, %d' % (T0, W, t))
            A('s_lshl_b32 %s, %s, 6' % (T0, T0))
            A('s_add_u32 %s, %s, %d' % (T0, T0, MISC))
            A('v_add_u32 v%d, %s, v100' % (101 + t, T0))
            A('ds_read_b128 %s, v%d' % (vr(a4 + 4 * t, 4), 101 + t))
            A('ds_read_b128 %s, v%d offset:256' % (vr(b4 + 4 * t, 4), 101 + t))
        AB = 188
        self.read_ab_T(AB, 105)
        A('s_lshr_b32 %s, %s, 1' % (T0, HEAD))
        A('s_lshl_b32 %s, %s, 2' % (T1, AQ))
        A('s_sub_u32 %s, %s, %s' % (T0, T0, T1))
        A('s_and_b32 %s, %s, 15' % (T0, T0))
        A('s_lshl_b32 %s, %s, 12' % (T0, T0))
        A('v_lshrrev_b32 v110, 5, %s' % vL)
        A('s_and_b32 %s, %s, 1' % (T1, W))
        A('s_lshl_b32 %s, %s, 1' % (T1, T1))
        A('v_add_u32 v110, %s, v110' % T1)
        A('v_bfe_u32 v111, %s, 3, 1' % vL)
        A('v_mul_u32_u24 v111, 3, v111')
        A('v_xor_b32 v110, v110, v111')
        A('v_lshlrev_b32 v110, 4, v110')
        A('v_and_b32 v111, 15, %s' % vL)
        A('v_lshl_add_u32 v110, v111, 6, v110')
        A('v_bfe_u32 v111, %s, 4, 1' % vL)
        A('v_lshl_add_u32 v110, v111, 3, v110')
        for t in range(4):
            A('s_xor_b32 %s, %s, %d' % (T1, W, t))
            A('s_lshl_b32 %s, %s, 10' % (T1, T1))
            A('s_add_u32 %s, %s, %s' % (T1, T1, T0))
            A('v_add_u32 v%d, %s, v110' % (196 + t, T1))
            A('ds_read_b64 %s, v%d' % (vr(XRES + 2 * t, 2), 196 + t))
        PK, VV = 132, 140
        for t in range(4):
            for h in range(2):
                i = 4 * t + 2 * h
                A('v_pk_fma_f32 %s, %s, %s, %s' % (vr(u0 + i, 2), vr(b4 + i, 2), vr(csK, 2), C_E6))
                A('v_pk_fma_f32 %s, %s, %s, %s' % (vr(accK + i, 2), vr(a4 + i, 2), vr(accK + i, 2), vr(u0 + i, 2)))
        self.phi_pairs([(PK + i, accK + 2 * i, u0 + 2 * i) for i in range(8)])
        for t in range(4):
            for h in range(2):
                i = 4 * t + 2 * h
                A('v_pk_mul_f32 %s, %s, %s' % (vr(u0 + i, 2), vr(b4 + i, 2), vr(csV, 2)))
                A('v_pk_fma_f32 %s, %s, %s, %s' % (vr(accV + i, 2), vr(a4 + i, 2), vr(accV + i, 2), vr(u0 + i, 2)))
                A('v_cvt_pk_bf16_f32 v%d, v%d, v%d' % (VV + i // 2, accV + i, accV + i + 1))
        KVP, ZP = 112, 116
        M = 'v_mfma_f32_16x16x32_bf16 %s, %s, %s, %s'
        A(M % (vr(KVP, 4), vr(PK, 4), vr(VV, 4), '0'))
        A(M % (vr(ZP, 4), vr(PK, 4), vr(ONES, 4), '0'))
        A(M % (vr(KVP, 4), vr(PK + 4, 4), vr(VV + 4, 4), vr(KVP, 4)))
        A(M % (vr(ZP, 4), vr(PK + 4, 4), vr(ONES, 4), vr(ZP, 4)))
        A('v_mov_b32 v124, %d' % BIG)
        A('v_lshrrev_b32 v125, 5, %s' % vL)
        A('v_and_b32 v126, 15, %s' % vL)
        A('v_lshlrev_b32 v125, 8, v125')
        A('v_lshl_add_u32 v125, v126, 4, v125')
        A('v_and_b32 v127, 16, %s' % vL)
        A('v_cmp_eq_u32 vcc, 0, v127')
        A('v_lshrrev_b32 v127, 4, %s' % vL)
        A('v_lshlrev_b32 v127, 9, v127')
        A('v_cndmask_b32 v125, v124, v125, vcc')
        A('v_cmp_eq_u32 vcc, 0, v126')
        A('s_lshl_b32 %s, %s, 14' % (T2, HEAD))
        A('s_lshl_b32 %s, %s, 9' % (T0, G))
        A('v_cndmask_b32 v127, v124, v127, vcc')
        A('s_add_u32 %s, %s, %s' % (T4, T2, T0))
        A('s_lshl_b32 %s, %s, 11' % (T3, HEAD))
        A('s_add_u32 %s, %s, %d' % (T3, T3, Z_OFF))
        A('s_lshl_b32 %s, %s, 4' % (T0, G))
        A('s_add_u32 %s, %s, %s' % (T5, T3, T0))
        lab = self.newlab('c0')
        A('v_cmp_gt_u32 vcc, 32, v200')
        A('s_cbranch_vccz %s_x' % lab)
        A.label(lab)
        A.raw('    buffer_load_dword v200, off, %s, 0 sc1' % sDBG)
        A.raw('    s_waitcnt vmcnt(0)')
        A('v_cmp_gt_u32 vcc, 32, v200')
        self.spin_tail(lab)
        A('v_cvt_pk_bf16_f32 v120, v%d, v%d' % (KVP, KVP + 1))
        A('v_cvt_pk_bf16_f32 v121, v%d, v%d' % (KVP + 2, KVP + 3))
        for r in range(4):
            A('v_min_u32 v%d, -2, v%d' % (ZP + r, ZP + r))
        A('v_min_u32 v120, -2, v120')
        A('v_min_u32 v121, -2, v121')
        A('v_mov_b32 v122, v120')
        A('v_mov_b32 v123, v121')
        self.pairswap(120)
        A('buffer_store_dwordx4 v[120:123], v125, %s, %s offen sc1' % (sWS, T4))
        A('buffer_store_dwordx4 %s, v127, %s, %s offen sc1' % (vr(ZP, 4), sWS, T5))
        A('s_getreg_b32 %s, hwreg(HW_REG_XCC_ID)' % T0)
        A('s_and_b32 %s, %s, 15' % (T0, T0))
        A('s_add_u32 %s, %s, 1' % (FAST, T0))
        A('v_mov_b32 v128, %s' % FAST)
        A('v_cmp_eq_u32 vcc, 0, v0')
        A('s_lshl_b32 %s, %s, 2' % (T0, J))
        A('v_mov_b32 v129, %s' % T0)
        A('v_cndmask_b32 v129, v124, v129, vcc')
        A('buffer_store_dword v128, v129, %s, %s offen sc1' % (sWS, SYB))
        self.stamp('pubkv')
        accQ, csQ = 52, 84
        fq = [100, 124]

        def qreads(s):
            b = fq[s & 1]
            return self.tr16(('v', b + 16), qslot[s]) + self.areads(vA, b, s)

        def qmf(s):
            b = fq[s & 1]
            c = (lambda r: '0') if s == 0 else (lambda r: vr(r, 4))
            wq = vr(b + 16, 4)
            return [M % (vr(csQ, 4), wq, vr(ONES, 4), c(csQ))] + \
                   [M % (vr(accQ + 4 * t, 4), wq, vr(b + 4 * t, 4), c(accQ + 4 * t)) for t in range(4)]
        for r in qreads(0):
            A(r)
        for s in range(16):
            fill = []
            if s + 1 < 16:
                if s + 1 == 8:
                    A.wait_lg()
                    A.wait_vm(Q[15].seq)
                    self.barrier()
                    fill += qreads(s + 1) + self.O[6:14]
                else:
                    fill += qreads(s + 1)
            self.inter(qmf(s), fill)
        A.wait_lg()
        self.barrier()
        for u in self.O[14:16] + [self.W1[(0, i)] for i in range(6)]:
            u()
        self.stamp('Aq')
        PQ = 180
        for t in range(4):
            for h in range(2):
                i = 4 * t + 2 * h
                ab = vr(AB + 2 * t, 2)
                A('v_pk_fma_f32 %s, %s, %s, %s op_sel:[0,1,0] op_sel_hi:[1,1,1]' % (vr(u0 + i, 2), vr(csQ + 2 * h, 2), ab, C_E6))
                A('v_pk_fma_f32 %s, %s, %s, %s op_sel:[0,0,0] op_sel_hi:[1,0,1]' % (vr(accQ + i, 2), vr(accQ + i, 2), ab, vr(u0 + i, 2)))
        self.phi_pairs([(PQ + i, accQ + 2 * i, u0 + 2 * i) for i in range(8)])
        KL, ZL, IDS = 100, 164, 172
        A('v_and_b32 v173, 15, %s' % vL)
        A('v_lshrrev_b32 v174, 4, %s' % vL)
        A('v_lshlrev_b32 v174, 9, v174')
        A('v_lshl_add_u32 v173, v173, 4, v174')
        A('v_and_b32 v174, 7, %s' % vL)
        A('v_lshlrev_b32 v174, 2, v174')
        lab = self.newlab('kv')
        A.wait_lg()
        A.fence()
        self.stamp('phiq')
        A.label(lab)
        A('buffer_load_dwordx4 %s, v173, %s, %s offen sc1' % (vr(ZL, 4), sWS, T3))
        A('buffer_load_dwordx4 %s, v173, %s, %s offen offset:256 sc1' % (vr(ZL + 4, 4), sWS, T3))
        A('buffer_load_dword v%d, v174, %s, %s offen sc1' % (IDS, sWS, SYB))
        for i in range(16):
            if i % 4 == 0:
                A('s_add_u32 %s, %s, %d' % (T0, T2, KV_OFF + i * 1024))
            A('buffer_load_dwordx4 %s, v%d, %s, %s offen offset:%d sc1' % (vr(KL + 4 * i, 4), vL16, sWS, T0, (i % 4) * 1024))
        A('v_max3_u32 v175, v%d, v%d, v%d' % (ZL, ZL + 1, ZL + 2))
        rest = list(range(ZL + 3, ZL + 8)) + list(range(KL, KL + 64))
        A('v_add_u32 v176, -1, v%d' % IDS)
        rest = [176] + rest
        for i in range(0, len(rest), 2):
            A('v_max3_u32 v175, v175, v%d, v%d' % (rest[i], rest[i + 1]))
        A.force_wait('vmcnt(0)')
        A('v_cmp_eq_u32 vcc, -1, v175')
        self.spin_tail(lab)
        self.stamp('gath')
        KS = 52
        for i in range(16):
            A(M % (vr(KS, 4), vr(SEL, 4), vr(KL + 4 * i, 4), '0' if i == 0 else vr(KS, 4)))
            if i < 4:
                A('v_add_f32 v%d, v%d, v%d' % (ZL + i, ZL + i, ZL + 4 + i))
            elif i >= 5 and i % 2 == 1 and i < 13:
                for r in range(4):
                    A('v_add_f32_dpp v%d, v%d, v%d row_ror:%d row_mask:0xf bank_mask:0xf' % (
                        ZL + r, ZL + r, ZL + r, 1 << ((i - 5) // 2)))
        A('v_cmp_ne_u32 vcc, %s, v%d' % (FAST, IDS))
        A('v_cvt_pk_bf16_f32 v58, v%d, v%d' % (ZL, ZL + 1))
        A('v_cvt_pk_bf16_f32 v59, v%d, v%d' % (ZL + 2, ZL + 3))
        A('s_cmp_eq_u64 vcc, 0')
        A('s_cselect_b32 %s, 1, 0' % FAST)
        A('v_cvt_pk_bf16_f32 v56, v%d, v%d' % (KS, KS + 1))
        A('v_cvt_pk_bf16_f32 v57, v%d, v%d' % (KS + 2, KS + 3))
        NUM, DEN = 60, 76
        M16 = 'v_mfma_f32_16x16x16_bf16 %s, %s, %s, 0'
        for t in range(4):
            A(M16 % (vr(DEN + 4 * t, 4), 'v[58:59]', vr(PQ + 2 * t, 2)))
        for t in range(4):
            A(M16 % (vr(NUM + 4 * t, 4), 'v[56:57]', vr(PQ + 2 * t, 2)))
        for t in range(4):
            A('v_add_f32 v%d, s4, v%d' % (DEN + 4 * t, DEN + 4 * t))
        for t in range(4):
            A('v_rcp_f32 v%d, v%d' % (DEN + 4 * t, DEN + 4 * t))
        OP = 92
        for t in range(4):
            for h in range(2):
                i = NUM + 4 * t + 2 * h
                A('v_pk_mul_f32 %s, %s, %s op_sel_hi:[1,0]' % (vr(i, 2), vr(i, 2), vr(DEN + 4 * t, 2)))
        for t in range(4):
            for h in range(2):
                i = NUM + 4 * t + 2 * h
                A('v_cvt_pk_bf16_f32 v%d, v%d, v%d' % (OP + 2 * t + h, i, i + 1))
        self.pairswap(OP)
        self.pairswap(OP + 4)
        A('s_mov_b32 %s, %d' % (T0, O_OFF))
        self.stores(['buffer_store_dwordx4 %s, v%d, %s, %s offen' % (vr(OP, 4), vOst0, sWS, T0),
                     'buffer_store_dwordx4 %s, v%d, %s, %s offen' % (vr(OP + 4, 4), vOst1, sWS, T0)])
        A.wait_all()
        self.barrier()
        self.set_flag(32)
        self.stamp('pubo')
        for s in range(16):
            for r in self.tr16(('a', 192 + 4 * s), self.oslot[s]):
                A(r)
        for i in range(6):
            for r in self.tr16(('a', 4 * i), self.w1slot[(0, i)]):
                A(r)
        A.wait_lg()
        self.barrier()

    def img_pass(self, units, mf, hooks=None, staged=True):
        A = self.A
        fb = [100, 116]
        hooks = hooks or {}
        if staged:
            A.wait_vm(units[3].seq)
            self.barrier()
        for r in self.areads(vH, fb[0], 0):
            A(r)
        for s in range(16):
            fill = []
            if s + 1 < 16:
                if staged and (s + 1) % 4 == 0:
                    A.wait_lg()
                    A.wait_vm(units[s + 4].seq)
                    self.barrier()
                fill += self.areads(vH, fb[(s + 1) & 1], s + 1)
            pre, extra = hooks.get(s, (None, []))
            if pre:
                pre()
            self.inter(mf(s, fb[s & 1]), fill + list(extra))

    def phaseB(self):
        A = self.A
        M = 'v_mfma_f32_16x16x32_bf16 %s, %s, %s, %s'
        self.wait_flags(32)
        self.stamp('gotO')
        U = [self.u_img(O_OFF, s) for s in range(16)]
        for u in U:
            u()
        todo = [(0, i) for i in range(6, 16)] + [(1, i) for i in range(12)]
        for sl, k in enumerate(todo):
            self.w1slot[k] = sl
            self.W1[k] = self.u_w1(k[0], k[1], sl)
            self.W1[k]()
        acc = 52

        def mf(s, b):
            return [M % (vr(acc + 4 * t, 4), ar(192 + 4 * s, 4), vr(b + 4 * t, 4), '0' if s == 0 else vr(acc + 4 * t, 4))
                    for t in range(4)]
        self.img_pass(U, mf)
        self.stamp('Bgemm')
        x = 68
        for i in range(8):
            A('v_lshlrev_b32 v%d, 16, v%d' % (x + 2 * i, XRES + i))
            A('v_and_b32 v%d, %s, v%d' % (x + 2 * i + 1, HI16, XRES + i))
        HP = 92
        for i in range(8):
            A('v_pk_add_f32 %s, %s, %s' % (vr(acc + 2 * i, 2), vr(acc + 2 * i, 2), vr(x + 2 * i, 2)))
        for i in range(8):
            A('v_cvt_pk_bf16_f32 v%d, v%d, v%d' % (HP + i, acc + 2 * i, acc + 2 * i + 1))
        self.pairswap(HP)
        self.pairswap(HP + 4)
        A('s_mov_b32 %s, %d' % (T0, H_OFF))
        self.stores(['buffer_store_dwordx4 %s, v%d, %s, %s offen' % (vr(HP, 4), vOst0, sWS, T0),
                     'buffer_store_dwordx4 %s, v%d, %s, %s offen' % (vr(HP + 4, 4), vOst1, sWS, T0)])
        A.wait_all()
        self.barrier()
        self.set_flag(64)
        self.stamp('pubh')
        for k in todo:
            for r in self.tr16(('a', (k[0] * 16 + k[1]) * 4), self.w1slot[k]):
                A(r)
        A.wait_lg()
        self.barrier()

    def w2_unit(self, p):
        def go():
            A = self.A
            if p < 11:
                base, off = T4, p * 2048
            elif p < 19:
                base, off = T5, (p - 11) * 2048
            else:
                base, off = T4, (p - 19) * 2048
            A('s_add_u32 m0, %s, %d' % (base, off))
            A('s_nop 0')
            A('buffer_load_dwordx4 v%d, %s, %s offen lds' % (vW2g, sW2, T2))
            A('s_add_u32 m0, %s, %d' % (base, off + 1024))
            A('s_add_u32 %s, %s, 8192' % (T0, T2))
            go.seq = A('buffer_load_dwordx4 v%d, %s, %s offen lds' % (vW2g, sW2, T0))
            A('s_add_u32 %s, %s, 16384' % (T2, T2))
            A('s_cmp_eq_u32 %s, %s' % (T2, T3))
            A('s_cselect_b32 %s, %s, %s' % (T2, sQq[0], T2))
        go.seq = None
        return go

    def w2_tr(self, p):
        if p < 11:
            r, off = self.vTring, p * 2048
        elif p < 19:
            r, off = self.vTr0, (p - 11) * 2048
        else:
            r, off = self.vTring, (p - 19) * 2048
        out = []
        for ct in range(2):
            for kq in range(2):
                d = p * 8 + ct * 4 + kq * 2
                out.append('ds_read_b64_tr_b16 a[%d:%d], v%d offset:%d' % (d, d + 1, r, off + kq * 512 + ct * 256))
        return out

    def phaseC(self):
        A = self.A
        M = 'v_mfma_f32_16x16x32_bf16 %s, %s, %s, %s'
        self.wait_flags(64)
        self.stamp('gotH')
        U = [self.u_img(H_OFF, s) for s in range(16)]
        for u in U:
            u()
        todo = [(1, i) for i in range(12, 16)] + [(2, i) for i in range(16)]
        for sl, k in enumerate(todo):
            self.w1slot[k] = sl
            self.W1[k] = self.u_w1(k[0], k[1], sl)
            self.W1[k]()
        acc = [52, 68, 84]
        cs = [132, 136, 140]
        SUM, GRAM = 144, 148

        def mf1(s, b):
            c = (lambda r: '0') if s == 0 else (lambda r: vr(r, 4))
            w = ar(4 * s, 4)
            return [M % (vr(cs[0], 4), w, vr(ONES, 4), c(cs[0])), M % (vr(acc[0], 4), w, vr(b, 4), c(acc[0])),
                    M % (vr(SUM, 4), vr(ONES, 4), vr(b, 4), c(SUM)), M % (vr(GRAM, 4), vr(b, 4), vr(b, 4), c(GRAM))] + \
                   [M % (vr(acc[0] + 4 * t, 4), w, vr(b + 4 * t, 4), c(acc[0] + 4 * t)) for t in range(1, 4)]
        self.img_pass(U, mf1)
        self.stamp('C1')
        self.stats(SUM, GRAM, 152, True)
        A('s_mul_i32 %s, %s, 11' % (T0, AQ))
        A('s_add_u32 %s, %s, 1' % (T0, T0))
        A('s_lshr_b32 %s, %s, 1' % (T0, T0))
        A('s_mul_i32 %s, %s, 22' % (T1, W))
        A('s_add_u32 %s, %s, %s' % (T0, T0, T1))
        A('s_lshl_b32 %s, %s, 7' % (T3, J))
        A('s_lshl_b32 %s, %s, 14' % (T2, T0))
        A('s_add_u32 %s, %s, %s' % (T2, T2, T3))
        A('s_lshl_b32 %s, %s, 14' % (sQq[0], T1))
        A('s_add_u32 %s, %s, %s' % (sQq[0], sQq[0], T3))
        A('s_add_u32 %s, %s, %d' % (T3, sQq[0], 22 * 16384))
        A('s_mul_i32 %s, %s, %d' % (sQx[0], G, HH_G))
        A('s_add_u32 %s, %s, %d' % (sQx[0], sQx[0], HH_OFF))
        A('s_lshl_b32 %s, %s, 10' % (sQx[1], T0))
        A('s_add_u32 %s, %s, %s' % (sQx[1], sQx[1], sQx[0]))
        A('s_lshl_b32 %s, %s, 10' % (sQx[2], T1))
        A('s_add_u32 %s, %s, %s' % (sQx[2], sQx[2], sQx[0]))
        A('s_add_u32 %s, %s, %d' % (sQx[3], sQx[2], 22 * 1024))
        A('s_mul_i32 %s, %s, 22528' % (T4, W))
        A('s_add_u32 %s, %s, %d' % (T4, T4, RING))
        A('s_lshl_b32 %s, %s, 14' % (T5, W))
        self.vTring, self.vTr0 = vXg, vWq
        A('v_add_u32 v%d, %s, v%d' % (self.vTring, T4, vT32))
        A('v_add_u32 v%d, %s, v%d' % (self.vTr0, T5, vT32))
        A.wait_lg()
        A.wait_vm(self.W1[todo[-1]].seq)
        self.barrier()
        AB = 164
        self.read_ab_T(AB, 152)
        W2 = [self.w2_unit(p) for p in range(22)]
        self.W2 = W2
        trs = {k: self.tr16(('a', (k[0] * 16 + k[1]) * 4), self.w1slot[k]) for k in todo}
        for r in trs[(2, 0)]:
            A(r)
        order = [(2, i) for i in range(1, 16)] + [(1, i) for i in range(12, 16)]
        allr = [r for k in order for r in trs[k]]

        def c2():
            A.wait_lg()
            self.barrier()
        hooks = {0: (None, allr[0:14]), 1: (None, allr[14:26]), 2: (None, allr[26:38]),
                 4: (c2, W2[0:2]), 5: (None, W2[2:4]), 6: (None, W2[4:6]), 7: (None, W2[6:8]), 8: (None, W2[8:10]),
                 9: (None, W2[10:11])}

        def mf2(s, b):
            c = (lambda r: '0') if s == 0 else (lambda r: vr(r, 4))
            out = []
            for k in (1, 2):
                w = ar((k * 16 + s) * 4, 4)
                out.append(M % (vr(cs[k], 4), w, vr(ONES, 4), c(cs[k])))
                out += [M % (vr(acc[k] + 4 * t, 4), w, vr(b + 4 * t, 4), c(acc[k] + 4 * t)) for t in range(4)]
            return out
        self.img_pass(U, mf2, hooks, staged=False)
        self.stamp('C2')
        HRES = XRES
        A('s_lshl_b32 %s, %s, 1' % (T0, J))
        A('s_lshl_b32 %s, %s, 2' % (T1, AQ))
        A('s_sub_u32 %s, %s, %s' % (T0, T0, T1))
        A('s_and_b32 %s, %s, 15' % (T0, T0))
        A('s_lshl_b32 %s, %s, 12' % (T0, T0))
        A('s_lshr_b32 %s, %s, 1' % (T1, W))
        A('s_lshl_b32 %s, %s, 10' % (T1, T1))
        A('s_add_u32 %s, %s, %s' % (T0, T0, T1))
        A('s_and_b32 %s, %s, 1' % (T1, W))
        A('s_lshl_b32 %s, %s, 7' % (T1, T1))
        A('s_add_u32 %s, %s, %s' % (T0, T0, T1))
        A('v_bfe_u32 v100, %s, 2, 1' % vL)
        A('v_lshlrev_b32 v100, 12, v100')
        A('v_and_b32 v101, 3, %s' % vL)
        A('v_lshl_add_u32 v100, v101, 8, v100')
        A('v_lshrrev_b32 v101, 3, %s' % vL)
        A('v_lshl_add_u32 v100, v101, 4, v100')
        A('v_add_u32 v100, %s, v100' % T0)
        A('ds_read_b128 %s, v100' % vr(HRES, 4))
        A('ds_read_b128 %s, v100 offset:2048' % vr(HRES + 4, 4))
        A.wait_lg()
        self.barrier()
        for p in range(11, 19):
            W2[p]()
        A.wait_vm(W2[10].seq)
        for p in range(11):
            for r in self.w2_tr(p):
                A(r)
        B1F = 100
        for c in range(3):
            for h in range(2):
                A('v_lshlrev_b32 v%d, 16, v%d' % (B1F + 4 * c + 2 * h, B1P + 2 * c + h))
                A('v_and_b32 v%d, %s, v%d' % (B1F + 4 * c + 2 * h + 1, HI16, B1P + 2 * c + h))
        A.wait_lg()
        for p in range(19, 22):
            W2[p]()
        self.stamp('w2a')
        u, e = 112, 172
        HP = 188
        for c in range(3):
            prs = [(t, h) for t in range(4) for h in range(2)]
            xs = [acc[c] + 4 * t + 2 * h for t, h in prs]
            for i, (t, h) in enumerate(prs):
                ab = vr(AB + 2 * t, 2)
                A('v_pk_fma_f32 %s, %s, %s, %s op_sel:[0,1,0] op_sel_hi:[1,1,1]' % (
                    vr(u + 2 * i, 2), vr(cs[c] + 2 * h, 2), ab, vr(B1F + 4 * c + 2 * h, 2)))
            for i, (t, h) in enumerate(prs):
                ab = vr(AB + 2 * t, 2)
                A('v_pk_fma_f32 %s, %s, %s, %s op_sel:[0,0,0] op_sel_hi:[1,0,1]' % (
                    vr(xs[i], 2), vr(xs[i], 2), ab, vr(u + 2 * i, 2)))
            for i in range(8):
                A('v_pk_mul_f32 %s, %s, %s' % (vr(e + 2 * i, 2), vr(xs[i], 2), vr(xs[i], 2)))
            for i in range(8):
                A('v_pk_fma_f32 %s, %s, %s, %s op_sel:[0,0,1] op_sel_hi:[1,0,1]' % (vr(e + 2 * i, 2), vr(e + 2 * i, 2), C_GELU, C_GELU))
            for i in range(8):
                A('v_pk_mul_f32 %s, %s, %s' % (vr(e + 2 * i, 2), vr(e + 2 * i, 2), vr(xs[i], 2)))
            for i in range(16):
                A('v_exp_f32 v%d, v%d' % (e + i, e + i))
            for i in range(8):
                A('v_pk_add_f32 %s, %s, 1.0 op_sel_hi:[1,0]' % (vr(e + 2 * i, 2), vr(e + 2 * i, 2)))
            for i in range(16):
                A('v_rcp_f32 v%d, v%d' % (e + i, e + i))
            for i in range(8):
                A('v_pk_mul_f32 %s, %s, %s' % (vr(xs[i], 2), vr(xs[i], 2), vr(e + 2 * i, 2)))
            hp = HP + 8 * c
            for i in range(8):
                A('v_cvt_pk_bf16_f32 v%d, v%d, v%d' % (hp + i, xs[i], xs[i] + 1))
            self.pairswap(hp)
            self.pairswap(hp + 4)
            A('s_add_u32 %s, %s, %d' % (T0, W, 4 * c))
            A('s_cmp_lt_u32 %s, %s' % (T0, NT))
            A('s_cselect_b32 %s, %s, %d' % (T1, sQx[0], BIG))
            A('s_add_u32 %s, %s, %s' % (T0, T0, TILE0))
            A('s_lshl_b32 %s, %s, 10' % (T0, T0))
            A('s_add_u32 %s, %s, %s' % (T0, T0, T1))
            A('s_lshr_b32 %s, %s, 1' % (T1, W))
            A('s_mul_i32 %s, %s, %d' % (T1, T1, 86 * 1024))
            A('s_add_u32 %s, %s, %s' % (sQo[0], T0, T1))
            A('s_sub_u32 %s, %d, %s' % (T1, 86 * 1024, T1))
            A('s_add_u32 %s, %s, %s' % (sQo[1], T0, T1))
            self.stores(['buffer_store_dwordx4 %s, v%d, %s, %s offen' % (vr(hp, 4), vHHst, sWS, sQo[0]),
                         'buffer_store_dwordx4 %s, v%d, %s, %s offen' % (vr(hp + 4, 4), vHHst, sWS, sQo[1])])
        self.stamp('gelu')
        A.wait_all()
        self.barrier()
        self.set_flag(96)
        self.stamp('pubhh')
        for p in range(11, 22):
            for r in self.w2_tr(p):
                A(r)

    def phaseD(self):
        A = self.A
        M = 'v_mfma_f32_32x32x16_bf16 %s, %s, %s, %s'
        HRES = XRES
        wa = [52, 53, 54, 55]
        ra = [56, 57, 58, 59]
        A('v_and_b32 v60, 31, %s' % vL)
        A('v_lshrrev_b32 v61, 5, %s' % vL)
        A('v_and_b32 v62, 7, %s' % vL)
        A('s_add_u32 %s, %s, 6144' % (T0, T4))
        for b in range(4):
            A('v_add_u32 v63, %d, v61' % (2 * b))
            A('v_xor_b32 v63, v63, v62')
            A('v_lshlrev_b32 v63, 4, v63')
            A('v_lshl_add_u32 v63, v60, 8, v63')
            A('v_add_u32 v%d, %s, v63' % (wa[b], T0))
        A('v_lshrrev_b32 v61, 3, %s' % vL)
        A('v_lshlrev_b32 v63, 1, v62')
        A('v_xor_b32 v63, v63, v61')
        A('v_lshlrev_b32 v63, 4, v63')
        A('v_lshl_add_u32 v63, v61, 8, v63')
        A('s_lshl_b32 %s, %s, 11' % (T0, W))
        A('s_add_u32 %s, %s, %d' % (T0, T0, RING + 6144))
        A('v_add_u32 v%d, %s, v63' % (ra[0], T0))
        A('v_xor_b32 v%d, 16, v%d' % (ra[1], ra[0]))
        A('v_add_u32 v%d, %d, v%d' % (ra[2], 2 * 22528, ra[0]))
        A('v_add_u32 v%d, %d, v%d' % (ra[3], 2 * 22528, ra[1]))
        A('v_lshlrev_b32 v63, 4, v62')
        A('v_lshl_add_u32 v63, v61, 10, v63')
        A('s_lshl_b32 %s, %s, 16' % (T0, G))
        A('s_lshl_b32 %s, %s, 13' % (T1, W))
        A('s_add_u32 %s, %s, %s' % (T0, T0, T1))
        A('s_lshl_b32 %s, %s, 7' % (T1, J))
        A('s_add_u32 %s, %s, %s' % (T0, T0, T1))
        A('v_add_u32 v60, %s, v63' % T0)
        A('s_add_u32 %s, %s, %d' % (sQo[2], sQx[0], 86 * 1024))
        self.wait_flags(96)
        self.stamp('gotHH')
        hb = [64, 152]
        for T in range(2):
            A('s_mov_b32 %s, %s' % (T2, sQx[1]))
            for p in range(22):
                A('s_cmp_lt_u32 %s, %s' % (T2, sQo[2]))
                A('s_cselect_b32 %s, %s, %d' % (T0, T2, BIG))
                if T:
                    A('s_add_u32 %s, %s, %d' % (T0, T0, 86 * 1024))
                A('buffer_load_dwordx4 %s, v%d, %s, %s offen sc1' % (vr(hb[T] + 4 * p, 4), vL16, sWS, T0))
                A('s_add_u32 %s, %s, 1024' % (T2, T2))
                A('s_cmp_eq_u32 %s, %s' % (T2, sQx[3]))
                A('s_cselect_b32 %s, %s, %s' % (T2, sQx[2], T2))
        acc = [176, 208]
        B2F = 240
        for i in range(4):
            A('v_lshlrev_b32 v%d, 16, v%d' % (B2F + 2 * i, B2P + i))
            A('v_and_b32 v%d, %s, v%d' % (B2F + 2 * i + 1, HI16, B2P + i))

        def writes(T):
            return ['ds_write_b128 v%d, %s offset:%d' % (wa[b], ar(acc[T] + 16 * ct + 4 * b, 4), T * 8192 + ct * 128)
                    for ct in range(2) for b in range(4)]

        def finish(T, buf):
            for src in range(4):
                for k in range(2):
                    A('ds_read_b128 %s, v%d offset:%d' % (vr(buf + 8 * src + 4 * k, 4), ra[2 * (src >> 1) + k],
                                                          (src & 1) * 22528 + T * 8192))
            hf = buf + 32
            for i in range(4):
                A('v_lshlrev_b32 v%d, 16, v%d' % (hf + 2 * i, HRES + 4 * T + i))
                A('v_and_b32 v%d, %s, v%d' % (hf + 2 * i + 1, HI16, HRES + 4 * T + i))
            for i in range(4):
                A('v_pk_add_f32 %s, %s, %s' % (vr(hf + 2 * i, 2), vr(hf + 2 * i, 2), vr(B2F + 2 * i, 2)))
            for src in range(4):
                for i in range(4):
                    A('v_pk_add_f32 %s, %s, %s' % (vr(hf + 2 * i, 2), vr(hf + 2 * i, 2), vr(buf + 8 * src + 2 * i, 2)))
            for i in range(4):
                A('v_cvt_pk_bf16_f32 v%d, v%d, v%d' % (buf + i, hf + 2 * i, hf + 2 * i + 1))
            if T:
                A('v_add_u32 v61, 0x8000, v60')
            A('buffer_store_dwordx4 %s, v%d, %s, 0 offen' % (vr(buf, 4), 60 + T, sOUT))

        for T in range(2):
            wr = writes(0) if T else []
            for p in range(22):
                for ct in range(2):
                    d = ar(acc[T] + 16 * ct, 16)
                    A(M % (d, ar(p * 8 + 4 * ct, 4), vr(hb[T] + 4 * p, 4), '0' if p == 0 else d))
                if T and p >= 1 and wr:
                    A(wr.pop(0))
            self.stamp('D%d' % T)
        for w in writes(1):
            A(w)
        A.wait_lg()
        self.barrier()
        finish(0, 64)
        finish(1, 112)
        self.stamp('end')
        if self.stamps == 2:
            A('v_readlane_b32 %s, v%d, 0' % (T0, VSTAMP))
            A('v_subrev_u32 v51, %s, v%d' % (T0, VSTAMP))
            A('v_lshlrev_b32 v50, 2, v0')
            A('v_cmp_eq_u32 vcc, 0, v0')
            A('v_mov_b32 v52, %d' % BIG)
            A('v_cndmask_b32 v50, v50, v52, vcc')
            A('s_cmp_lg_u32 s2, 77')
            A('s_cbranch_scc1 L_end')
            A('buffer_store_dword v51, v50, %s, 0 offen' % sDBG)
        elif self.stamps:
            A('s_lshl_b32 %s, s2, 10' % T0)
            A('s_add_u32 %s, %s, %d' % (T0, T0, STAMP_OFF))
            A('v_lshlrev_b32 v50, 2, v0')
            A('buffer_store_dword v%d, v50, %s, %s offen' % (VSTAMP, sWS, T0))

    def build(self):
        A = self.A
        self.prologue()
        self.phaseA()
        self.phaseB()
        self.phaseC()
        self.phaseD()
        A.label('L_end')
        A.raw('    s_endpgm')
        A.label('L_code_end')
        ref = open('cdna_kernels/%s.s.ref' % NAME).read().split('\n')
        head = [l for l in ref if l.startswith(';') and '@launch' not in l and 'Override' not in l and 'grid=ceil' not in l]
        out = '\n'.join(head) + '\n; @launch grid=(256,1,1) block=(256,1,1) lds=%d\n' % LDS_BYTES
        out += '.amdgcn_target "amdgcn-amd-amdhsa--gfx950"\n.set CODE_BYTES, L_code_end - %s - 64\n' % KERN
        out += '.text\n.globl %s\n.p2align 8\n.type %s,@function\n%s:\n' % (KERN, KERN, KERN)
        out += A.text()
        out += '''.section .rodata,"a"
.p2align 6
.amdhsa_kernel %s
  .amdhsa_next_free_vgpr 512
  .amdhsa_next_free_sgpr 102
  .amdhsa_accum_offset 256
  .amdhsa_group_segment_fixed_size 0
  .amdhsa_kernarg_size 88
  .amdhsa_user_sgpr_count 2
  .amdhsa_user_sgpr_kernarg_segment_ptr 1
  .amdhsa_system_sgpr_workgroup_id_x 1
.end_amdhsa_kernel
''' % KERN
        return out


if __name__ == '__main__':
    stamps = 2 if '--dbgstamps' in sys.argv else ('--stamps' in sys.argv)
    fast = '--fast' in sys.argv
    outp = [a for a in sys.argv[1:] if not a.startswith('--')]
    g = Gen(stamps, fast)
    txt = g.build()
    path = outp[0] if outp else 'cdna_kernels/%s.s' % NAME
    open(path, 'w').write(txt)
    if stamps:
        open(path + '.names', 'w').write('\n'.join(g.stnames))
    print('instructions', g.A.count, 'nop states', g.A.nops, file=sys.stderr)
```

```python
import sys, math, struct
from asmlib import Asm

NAME = 'sequential_preLN__linear_attn_block__mixer_channel_mlp__prompt'
KERN = NAME + '_kernel'

KV_OFF = 0x0
Z_OFF = 0x80000
SY_OFF = 0x90000
H_OFF = 0x100000
O_OFF = 0x300000
HH_OFF = 0x500000
HH_G = 2 * 86 * 1024
WS_USE = HH_OFF + 32 * HH_G
STAMP_OFF = 0xB00000
BIG = 0x40000000

RING = 65536
NSLOT = 22
MISC = RING + NSLOT * 4096
LDS_BYTES = 163840


def f32(x):
    return '0x%08x' % struct.unpack('<I', struct.pack('<f', x))[0]


def vr(b, n):
    return 'v[%d:%d]' % (b, b + n - 1) if n > 1 else 'v%d' % b


def ar(b, n):
    return 'a[%d:%d]' % (b, b + n - 1) if n > 1 else 'a%d' % b


sX, sWQ, sWO, sW1, sW2, sOUT, sWS, sB1, sB2, sDBG, sCODE = [
    's[%d:%d]' % (b, b + 3) for b in (28, 32, 36, 40, 44, 48, 52, 56, 60, 64, 68)]
G, J, W, AQ, WL, T0, T1, SPIN = ['s%d' % i for i in range(72, 80)]
sQq = ['s%d' % i for i in range(80, 84)]
sQx = ['s%d' % i for i in range(84, 88)]
sQo = ['s%d' % i for i in range(88, 92)]
sQ1 = ['s%d' % i for i in range(92, 96)]
sQi = ['s%d' % i for i in range(96, 100)]
C_E6, C_L2E, C_GELU = 's[4:5]', 's[6:7]', 's[8:9]'
FAST, SYB, HEAD, NT = 's10', 's11', 's14', 's15'
EXS = 's[12:13]'
T2, T3, T4, T5 = 's16', 's17', 's18', 's19'
DBGP = 's[22:23]'
TILE0 = 's26'
HI16 = 's27'

vL = 'v1'
vA = [2, 3, 4, 5]
vH = [6, 7, 8, 9]
vTrA, vTrB = 10, 11
vXg, vWq, vWo, vW1, vW1m, vLin, vOst0, vOst1, vHHst, vW2g, vT32, vL16 = range(12, 24)
ONES, SEL, XRES, B1P, B2P = 24, 28, 32, 40, 46
VSTAMP = 255


class Gen:
    def __init__(self, stamps=False, fast=False):
        self.A = Asm()
        self.stamps = stamps
        self.fast = fast
        self.nst = 0
        self.stnames = []
        self.lab = 0
        self.pad = 0

    def stamp(self, name):
        if not self.stamps:
            return
        if self.stamps == 2 and name not in ('args', 'issued', 'A0', 'Akv', 'pubkv', 'Aq', 'gath', 'pubo', 'gotO', 'pubh', 'gotH', 'C1', 'C2', 'pubhh', 'gotHH', 'end'):
            return
        A = self.A
        A.wait_lg()
        A('s_memtime s[100:101]')
        A.wait_lg()
        A('v_writelane_b32 v%d, s100, %d' % (VSTAMP, self.nst))
        self.stnames.append(name)
        self.nst += 1

    def newlab(self, p):
        self.lab += 1
        return 'L_%s%d' % (p, self.lab)

    def inter(self, mf, fill, per=2):
        A = self.A
        fill = list(fill)
        for m in mf:
            A(m)
            for _ in range(per):
                if fill:
                    self.run(fill.pop(0))
        for f in fill:
            self.run(f)

    def run(self, f):
        if callable(f):
            return f()
        return self.A(f)

    def slot_addr(self, slot, extra=0):
        off = slot * 4096 + extra
        return (vTrA, off) if off < 65536 else (vTrB, off - 65536)

    def dma_unit(self, srd, vaddr, sbase, const, slot, flags=''):
        def go():
            A = self.A
            A('s_add_u32 m0, %s, %d' % (WL, slot))
            A('s_add_u32 %s, %s, %d' % (T0, sbase, const))
            go.seq = A('buffer_load_dwordx4 v%d, %s, %s offen %slds' % (vaddr, srd, T0, flags))
            return go.seq
        go.seq = None
        return go

    def u_qkv(self, blk, s, slot):
        return self.dma_unit(sWQ, vWq, sQq[s >> 2], (s & 3) * 32 * 3072 + blk * 1024, RING + slot * 4096)

    def u_wo(self, s, slot):
        return self.dma_unit(sWO, vWo, sQo[s >> 2], (s & 3) * 32 * 1024, RING + slot * 4096)

    def u_w1(self, b, s, slot):
        return self.dma_unit(sW1, vW1m if b == 2 else vW1, sQ1[s >> 2], (s & 3) * 32 * 2752 + b * 128,
                             RING + slot * 4096)

    def u_x(self, s):
        return self.dma_unit(sX, vXg, sQx[s >> 2], (s & 3) * 64, s * 4096)

    def u_img(self, base, s):
        return self.dma_unit(sWS, vLin, sQi[s >> 2], base + (s & 3) * 4096, s * 4096, 'sc1 ')

    def tr16(self, dst, slot):
        out = []
        for kq in range(2):
            r, off = self.slot_addr(slot, kq * 512)
            out.append('ds_read_b64_tr_b16 %s[%d:%d], v%d offset:%d' % (dst[0], dst[1] + 2 * kq, dst[1] + 2 * kq + 1, r, off))
        return out

    def areads(self, addr, dst, s):
        return ['ds_read_b128 %s, v%d offset:%d' % (vr(dst + 4 * t, 4), addr[t], s * 4096) for t in range(4)]

    def barrier(self):
        self.A('s_barrier')

    def store(self, text):
        self.A(text + ' sc1')

    def stores(self, lst):
        A = self.A
        if not self.fast:
            seq = None
            for t in lst:
                seq = A(t + ' sc1')
            return seq
        l1, l2 = self.newlab('sl'), self.newlab('sd')
        A('s_cmp_lg_u32 %s, 0' % FAST)
        for t in lst:
            pass
        A.fence()
        A('s_cbranch_scc1 %s' % l1)
        seq = None
        for t in lst:
            seq = A(t + ' sc1')
        A('s_branch %s' % l2)
        A.label(l1)
        for t in lst:
            A.raw('    ' + t)
        A.label(l2)
        return seq

    def spin_tail(self, lab):
        A = self.A
        A('s_cbranch_vccz %s_x' % lab)
        A('s_add_u32 %s, %s, 1' % (SPIN, SPIN))
        A('s_cmp_lt_u32 %s, 0x200000' % SPIN)
        A('s_cbranch_scc1 %s' % lab)
        A.label(lab + '_x')

    def set_flag(self, off):
        A = self.A
        l = self.newlab('fl')
        A('s_cmp_lg_u32 %s, 0' % W)
        A('s_cbranch_scc1 %s' % l)
        A('s_lshl_b32 %s, %s, 2' % (T0, J))
        A('s_add_u32 %s, %s, %s' % (T0, T0, SYB))
        A('v_mov_b32 v50, 1')
        A('s_mov_b64 %s, exec' % EXS)
        A('s_mov_b64 exec, 1')
        t = 'buffer_store_dword v50, off, %s, %s offset:%d' % (sWS, T0, off)
        if self.fast:
            l1, l2 = self.newlab('f1'), self.newlab('f2')
            A('s_cmp_lg_u32 %s, 0' % FAST)
            A('s_cbranch_scc1 %s' % l1)
            A.raw('    ' + t + ' sc1')
            A('s_branch %s' % l2)
            A.label(l1)
            A.raw('    ' + t)
            A.label(l2)
        else:
            A.raw('    ' + t + ' sc1')
        A('s_mov_b64 exec, %s' % EXS)
        A.label(l)

    def wait_flags(self, off):
        A = self.A
        lab = self.newlab('pw')
        A('v_and_b32 v50, 7, %s' % vL)
        A('v_lshlrev_b32 v50, 2, v50')
        A.wait_all()
        A.fence()
        A.label(lab)
        A('buffer_load_dword v51, v50, %s, %s offen offset:%d sc1' % (sWS, SYB, off))
        A.force_wait('vmcnt(0)')
        A('v_cmp_ne_u32 vcc, 1, v51')
        self.spin_tail(lab)

    def rbf2(self, dlo, dhi, a, b, tmp):
        A = self.A
        A('v_cvt_pk_bf16_f32 v%d, v%d, v%d' % (tmp, a, b))
        if dhi is not None:
            A('v_and_b32 v%d, %s, v%d' % (dhi, HI16, tmp))
        A('v_lshlrev_b32 v%d, 16, v%d' % (dlo, tmp))

    def stats(self, SUM, GRAM, t, double):
        A = self.A
        q, mu, var, m, v, s, rs, x, y, a, b, ad = range(t, t + 12)
        A('v_and_b32 v%d, 1, %s' % (x, vL))
        A('v_cmp_eq_u32 vcc, 1, v%d' % x)
        A('v_cndmask_b32 v%d, v%d, v%d, vcc' % (q, GRAM, GRAM + 1))
        A('v_cndmask_b32 v%d, v%d, v%d, vcc' % (y, GRAM + 2, GRAM + 3))
        A('v_and_b32 v%d, 2, %s' % (x, vL))
        A('v_cmp_eq_u32 vcc, 2, v%d' % x)
        A('v_mul_f32 v%d, %s, v%d' % (mu, f32(1.0 / 512), SUM))
        A('v_cndmask_b32 v%d, v%d, v%d, vcc' % (q, q, y))
        A('v_mul_f32 v%d, v%d, v%d' % (x, mu, mu))
        A('v_mul_f32 v%d, %s, v%d' % (q, f32(1.0 / 512), q))
        A('v_sub_f32 v%d, v%d, v%d' % (var, q, x))
        A('v_max_f32 v%d, 0, v%d' % (var, var))
        self.rbf2(m, v, mu, var, x)
        A('v_add_f32 v%d, %s, v%d' % (v, f32(1e-5), v))
        self.rbf2(v, None, v, v, x)
        A('v_sqrt_f32 v%d, v%d' % (s, v))
        self.rbf2(s, None, s, s, x)
        A('v_rcp_f32 v%d, v%d' % (rs, s))
        if not double:
            A('v_mov_b32 v%d, v%d' % (a, rs))
            A('v_mul_f32_e64 v%d, -v%d, v%d' % (b, m, rs))
        else:
            A('v_sub_f32 v%d, v%d, v%d' % (x, mu, m))
            A('v_mul_f32 v%d, v%d, v%d' % (y, var, rs))
            A('v_mul_f32 v%d, v%d, v%d' % (x, x, rs))
            A('v_mul_f32 v%d, v%d, v%d' % (y, y, rs))
            self.rbf2(x, y, x, y, q)
            A('v_add_f32 v%d, %s, v%d' % (y, f32(1e-5), y))
            self.rbf2(y, None, y, y, q)
            A('v_sqrt_f32 v%d, v%d' % (y, y))
            self.rbf2(y, None, y, y, q)
            A('v_rcp_f32 v%d, v%d' % (y, y))
            A('v_fmac_f32 v%d, v%d, v%d' % (x, m, rs))
            A('v_mul_f32 v%d, v%d, v%d' % (a, rs, y))
            A('v_mul_f32_e64 v%d, -v%d, v%d' % (b, x, y))
        A('v_bfe_u32 v%d, %s, 2, 2' % (x, vL))
        A('v_lshrrev_b32 v%d, 4, %s' % (y, vL))
        A('v_cmp_eq_u32 vcc, v%d, v%d' % (x, y))
        A('v_and_b32 v%d, 15, %s' % (ad, vL))
        A('s_lshl_b32 %s, %s, 6' % (T0, W))
        A('s_add_u32 %s, %s, %d' % (T0, T0, MISC))
        A('v_lshl_add_u32 v%d, v%d, 2, %s' % (ad, ad, T0))
        A('s_and_saveexec_b64 %s, vcc' % EXS)
        A('ds_write_b32 v%d, v%d' % (ad, a))
        A('ds_write_b32 v%d, v%d offset:256' % (ad, b))
        A('s_mov_b64 exec, %s' % EXS)

    def read_ab_T(self, dst, tmp):
        A = self.A
        A('v_and_b32 v%d, 15, %s' % (tmp, vL))
        A('v_lshlrev_b32 v%d, 2, v%d' % (tmp, tmp))
        for t in range(4):
            A('s_xor_b32 %s, %s, %d' % (T0, W, t))
            A('s_lshl_b32 %s, %s, 6' % (T0, T0))
            A('s_add_u32 %s, %s, %d' % (T0, T0, MISC))
            A('v_add_u32 v%d, %s, v%d' % (tmp + 1 + t, T0, tmp))
            A('ds_read2_b32 %s, v%d offset0:0 offset1:64' % (vr(dst + 2 * t, 2), tmp + 1 + t))

    def phi_pairs(self, pairs):
        A = self.A
        for d, x, t in pairs:
            A('v_pk_mul_f32 %s, %s, %s' % (vr(t, 2), vr(x, 2), C_L2E))
        for d, x, t in pairs:
            A('v_exp_f32_e64 v%d, v%d clamp' % (t, t))
            A('v_exp_f32_e64 v%d, v%d clamp' % (t + 1, t + 1))
        for d, x, t in pairs:
            A('v_max_f32 v%d, s4, v%d' % (x, x))
            A('v_max_f32 v%d, s4, v%d' % (x + 1, x + 1))
        for d, x, t in pairs:
            A('v_pk_add_f32 %s, %s, %s' % (vr(x, 2), vr(x, 2), vr(t, 2)))
        for d, x, t in pairs:
            A('v_cvt_pk_bf16_f32 v%d, v%d, v%d' % (d, x, x + 1))

    def pairswap(self, p):
        A = self.A
        A('v_permlane16_swap_b32 v%d, v%d' % (p, p + 2))
        A('v_permlane16_swap_b32 v%d, v%d' % (p + 1, p + 3))

    def prologue(self):
        A = self.A
        A('s_cmp_ge_u32 s2, 256')
        A('s_cbranch_scc1 L_end')
        A('s_load_dwordx16 s[4:19], s[0:1], 0')
        A('s_load_dwordx4 s[20:23], s[0:1], 64')
        A('s_load_dwordx2 s[24:25], s[0:1], 80')
        if self.stamps:
            A('s_memrealtime s[100:101]')
        if self.pad:
            A('s_memrealtime s[2:3]') if False else None
            A('s_mov_b32 s3, s2')
            A('s_memrealtime s[100:101]')
        A('s_getpc_b64 s[68:69]')
        A('s_mov_b32 s70, CODE_BYTES')
        A('s_mov_b32 s71, 0x20000')
        A('v_and_b32 %s, 63, v0' % vL)
        A('v_lshrrev_b32 v50, 6, v0')
        A('s_lshr_b32 %s, s2, 3' % T0)
        A('s_and_b32 %s, %s, 15' % (T0, T0))
        A('s_lshl_b32 %s, %s, 11' % (T0, T0))
        A('v_lshlrev_b32 v51, 7, v0')
        A('v_cmp_gt_u32 vcc, 16, v0')
        A('v_readfirstlane_b32 %s, v50' % W)
        A('v_mov_b32 v52, %d' % BIG)
        A('v_cndmask_b32 v51, v52, v51, vcc')
        A('buffer_load_dword v254, v51, %s, %s offen' % (sCODE, T0))
        A('s_and_b32 %s, s2, 31' % G)
        A('s_lshr_b32 %s, s2, 5' % J)
        A('s_lshr_b32 %s, %s, 3' % (AQ, G))
        A('s_lshl_b32 %s, %s, 10' % (WL, W))
        A('s_mov_b32 %s, 0' % SPIN)
        A('v_lshrrev_b32 v54, 2, %s' % vL)
        A('v_lshrrev_b32 v55, 5, %s' % vL)
        A('v_mul_u32_u24 v55, 3, v55')
        A('v_and_b32 v56, 3, %s' % vL)
        A('v_xor_b32 v55, v55, v56')
        A('v_lshlrev_b32 v55, 4, v55')
        A('v_lshl_add_u32 v55, v54, 10, v55')
        A('s_lshl_b32 %s, %s, 14' % (T0, W))
        A('v_add_u32 v%d, %s, v55' % (vXg, T0))
        A('v_lshrrev_b32 v57, 5, %s' % vL)
        A('v_bfe_u32 v58, %s, 2, 2' % vL)
        A('v_lshl_add_u32 v57, v57, 2, v58')
        A('s_lshl_b32 %s, %s, 3' % (T0, W))
        A('v_add_u32 v59, %s, v57' % T0)
        A('s_and_b32 %s, %s, 1' % (T0, W))
        A('s_lshl_b32 %s, %s, 1' % (T0, T0))
        A('v_xor_b32 v60, %s, v56' % T0)
        A('v_bfe_u32 v61, %s, 4, 1' % vL)
        A('v_lshlrev_b32 v62, 6, v61')
        A('v_lshl_add_u32 v60, v60, 4, v62')
        A('s_movk_i32 %s, 3072' % T0)
        A('v_mad_u32_u24 v%d, v59, %s, v60' % (vWq, T0))
        for t in range(4):
            A('s_add_u32 %s, %s, %d' % (T0, AQ, t))
            A('s_and_b32 %s, %s, 3' % (T0, T0))
            A('s_mul_i32 %s, %s, %d' % (sQq[t], T0, 128 * 3072))
            A('s_lshl_b32 %s, %s, 8' % (sQx[t], T0))
            A('s_lshl_b32 %s, %s, 17' % (sQo[t], T0))
            A('s_mul_i32 %s, %s, %d' % (sQ1[t], T0, 128 * 2752))
            A('s_lshl_b32 %s, %s, 14' % (sQi[t], T0))
        A('s_lshl_b32 %s, %s, 7' % (T0, J))
        A('s_lshl_b32 %s, %s, 16' % (T1, G))
        for t in range(4):
            A('s_add_u32 %s, %s, %s' % (sQq[t], sQq[t], T0))
            A('s_add_u32 %s, %s, %s' % (sQx[t], sQx[t], T1))
            A('s_add_u32 %s, %s, %s' % (sQo[t], sQo[t], T0))
            A('s_add_u32 %s, %s, %s' % (sQi[t], sQi[t], T1))
        A.wait_lg()
        if self.stamps:
            A('v_writelane_b32 v%d, s100, 63' % VSTAMP)
        for srd, p, size in ((28, 4, 2097152), (32, 6, 1572864), (52, 24, STAMP_OFF + 0x100000 if self.stamps else WS_USE)):
            A('s_mov_b32 s%d, s%d' % (srd, p))
            A('s_mov_b32 s%d, s%d' % (srd + 1, p + 1))
            A('s_mov_b32 s%d, %d' % (srd + 2, size))
            A('s_mov_b32 s%d, 0x20000' % (srd + 3))
        self.stamp('args')
        A('v_lshlrev_b32 v63, 10, v0')
        A('v_cmp_gt_u32 vcc, 64, v0')
        A('s_add_u32 %s, %s, %s' % (T0, T0, T1))
        A('v_cndmask_b32 v63, v52, v63, vcc')
        A('buffer_load_dword v253, v63, %s, %s offen' % (sX, T0))
        self.KV = {}
        self.X = {}
        for s in range(11):
            self.KV[s] = (self.u_qkv(1, s, 2 * s), self.u_qkv(2, s, 2 * s + 1))
        for s in range(16):
            self.X[s] = self.u_x(s)
        for s in range(4):
            self.KV[s][0]()
            self.KV[s][1]()
        for srd, p, size in ((36, 8, 524288), (40, 12, 1409024), (44, 16, 1409024), (48, 20, 2097152),
                             (56, 14, 2752), (60, 18, 1024), (64, 22, 256)):
            A('s_mov_b32 s%d, s%d' % (srd, p))
            A('s_mov_b32 s%d, s%d' % (srd + 1, p + 1))
            A('s_mov_b32 s%d, %d' % (srd + 2, size))
            A('s_mov_b32 s%d, 0x20000' % (srd + 3))
        A('s_mul_i32 %s, %s, 11' % (TILE0, J))
        A('s_and_b32 %s, %s, 1' % (T0, J))
        A('s_add_u32 %s, %s, %s' % (TILE0, TILE0, T0))
        A('s_min_u32 %s, %s, 76' % (TILE0, TILE0))
        A('s_cmp_ge_u32 %s, 6' % J)
        A('s_cselect_b32 %s, 1, %s' % (T0, T0))
        A('s_cmp_eq_u32 %s, 0' % T0)
        A('s_cselect_b32 %s, 12, 10' % NT)
        A('v_lshrrev_b32 v64, 4, %s' % vL)
        A('v_lshlrev_b32 v65, 3, v64')
        A('s_add_u32 %s, %s, %s' % (T0, TILE0, W))
        A('s_lshl_b32 %s, %s, 5' % (T0, T0))
        for c in range(3):
            A('buffer_load_dwordx2 %s, v65, %s, %s offen offset:%d' % (vr(B1P + 2 * c, 2), sB1, T0, c * 128))
        A('v_and_b32 v66, 7, %s' % vL)
        A('v_lshlrev_b32 v66, 4, v66')
        A('s_lshl_b32 %s, %s, 7' % (T0, J))
        A('buffer_load_dwordx4 %s, v66, %s, %s offen' % (vr(B2P, 4), sB2, T0))
        A('s_lshl_b32 %s, %s, 8' % (SYB, G))
        A('s_add_u32 %s, %s, %d' % (SYB, SYB, SY_OFF))
        A('v_lshlrev_b32 v%d, 4, %s' % (vL16, vL))
        A('v_add_u32 v%d, %s, v%d' % (vLin, WL, vL16))
        for r in range(4):
            A('v_mov_b32 v%d, -1' % (68 + r))
            A('v_mov_b32 v%d, 0' % (72 + r))
        A('v_cmp_gt_u32 vcc, 128, v0')
        A('v_cndmask_b32 v76, v52, v%d, vcc' % vLin)
        A('v_cmp_gt_u32 vcc, 8, v0')
        A('v_cndmask_b32 v77, v52, v%d, vcc' % vLin)
        A('s_mul_i32 %s, %s, 18432' % (T0, G))
        A.fence()
        A('s_cmp_lg_u32 %s, 0' % J)
        A('s_cbranch_scc1 L_noinit')
        for i in range(5):
            A.raw('    buffer_store_dwordx4 v[68:71], v%d, %s, %s offen sc1' % (vLin if i < 4 else 76, sWS, T0))
            A.raw('    s_add_u32 %s, %s, 4096' % (T0, T0))
        A.raw('    buffer_store_dwordx4 v[72:75], v77, %s, %s offen sc1' % (sWS, SYB))
        A.label('L_noinit')
        for s in range(4):
            self.X[s]()
        for s in range(4, 8):
            self.KV[s][0]()
            self.KV[s][1]()
        for s in range(4, 8):
            self.X[s]()
        for s in range(8, 11):
            self.KV[s][0]()
            self.KV[s][1]()
        for s in range(8, 16):
            self.X[s]()
        self.stamp('issued')
        A('s_mov_b32 s4, %s' % f32(1e-6))
        A('s_mov_b32 s5, %s' % f32(1e-6))
        A('s_mov_b32 s6, %s' % f32(math.log2(math.e)))
        A('s_mov_b32 s7, %s' % f32(math.log2(math.e)))
        c0 = -2.0 * math.sqrt(2.0 / math.pi) * math.log2(math.e)
        A('s_mov_b32 s8, %s' % f32(c0 * 0.044715))
        A('s_mov_b32 s9, %s' % f32(c0))
        A('s_mov_b32 %s, 0xffff0000' % HI16)
        A('s_mov_b32 %s, 0' % FAST)
        A('s_lshl_b32 %s, %s, 2' % (HEAD, J))
        A('s_add_u32 %s, %s, %s' % (HEAD, HEAD, W))
        A('s_lshl_b32 %s, %s, 5' % (T0, TILE0))
        for t in range(4):
            A('s_add_u32 %s, %s, %s' % (sQ1[t], sQ1[t], T0))
        A('v_lshl_add_u32 v%d, v59, 10, v60' % vWo)
        A('s_movk_i32 %s, 2752' % T0)
        A('v_mad_u32_u24 v%d, v59, %s, v60' % (vW1, T0))
        A('s_cmp_eq_u32 %s, 10' % NT)
        A('s_cselect_b32 %s, %d, 0' % (T0, BIG))
        A('v_mul_lo_u32 v62, v61, %s' % T0)
        A('v_add_u32 v%d, v62, v%d' % (vW1m, vW1))
        A('v_lshlrev_b32 v62, 6, v61')
        A('v_lshl_add_u32 v62, v56, 4, v62')
        A('v_lshl_add_u32 v%d, v57, 10, v62' % vW2g)
        A('v_and_b32 v67, 15, %s' % vL)
        A('v_lshrrev_b32 v68, 3, v67')
        A('v_mul_u32_u24 v68, 3, v68')
        A('v_xor_b32 v68, v68, v64')
        A('v_lshlrev_b32 v68, 4, v68')
        A('v_lshl_add_u32 v68, v67, 6, v68')
        for t in range(4):
            A('s_xor_b32 %s, %s, %d' % (T0, W, t))
            A('s_lshl_b32 %s, %s, 10' % (T0, T0))
            A('v_add_u32 v%d, %s, v68' % (vA[t], T0))
            A('v_add_u32 v%d, %s, v%d' % (vH[t], T0, vL16))
        A('v_and_b32 v69, 1, v64')
        A('s_and_b32 %s, %s, 1' % (T0, W))
        A('v_xor_b32 v70, %s, v69' % T0)
        A('v_lshlrev_b32 v71, 5, v70')
        A('v_lshl_add_u32 v71, v64, 10, v71')
        A('v_lshl_add_u32 v71, v58, 6, v71')
        A('v_lshl_add_u32 v71, v56, 3, v71')
        A('s_lshr_b32 %s, %s, 1' % (T1, W))
        A('s_lshl_b32 %s, %s, 8' % (T1, T1))
        A('s_add_u32 %s, %s, %d' % (T1, T1, RING))
        A('v_add_u32 v%d, %s, v71' % (vTrA, T1))
        A('v_add_u32 v%d, 0x10000, v%d' % (vTrB, vTrA))
        A('v_lshrrev_b32 v72, 1, v64')
        A('v_xor_b32 v73, %s, v69' % W)
        A('v_lshlrev_b32 v73, 10, v73')
        A('v_lshl_add_u32 v73, v72, 8, v73')
        A('v_lshl_add_u32 v73, v67, 4, v73')
        A('s_lshl_b32 %s, %s, 9' % (T0, T0))
        A('s_lshr_b32 %s, %s, 1' % (T1, HEAD))
        A('s_lshl_b32 %s, %s, 12' % (T1, T1))
        A('s_add_u32 %s, %s, %s' % (T0, T0, T1))
        A('s_lshl_b32 %s, %s, 16' % (T1, G))
        A('s_add_u32 %s, %s, %s' % (T0, T0, T1))
        A('v_add_u32 v%d, %s, v73' % (vOst0, T0))
        A('v_xor_b32 v%d, 0x800, v%d' % (vOst1, vOst0))
        A('v_lshlrev_b32 v74, 9, v72')
        A('v_lshl_add_u32 v74, v70, 8, v74')
        A('v_lshl_add_u32 v%d, v67, 4, v74' % vHHst)
        A('v_lshrrev_b32 v74, 5, %s' % vL)
        A('v_lshlrev_b32 v74, 10, v74')
        A('v_lshl_add_u32 v74, v61, 5, v74')
        A('v_lshl_add_u32 v74, v58, 6, v74')
        A('v_lshl_add_u32 v%d, v56, 3, v74' % vT32)
        for r in range(4):
            A('v_mov_b32 v%d, 0x3f803f80' % (ONES + r))
        A('v_lshlrev_b32 v75, 3, v69')
        A('v_sub_u32 v75, v67, v75')
        A('v_and_b32 v76, 1, v75')
        A('v_lshlrev_b32 v76, 4, v76')
        A('s_movk_i32 %s, 0x3f80' % T0)
        A('v_lshlrev_b32_e64 v76, v76, %s' % T0)
        A('v_ashrrev_i32 v75, 1, v75')
        for r in range(4):
            A('v_cmp_eq_u32 vcc, %d, v75' % r)
            A('v_cndmask_b32 v%d, 0, v76, vcc' % (SEL + r))

    def phaseA(self):
        A = self.A
        accK, accV, csK, csV, SUM, GRAM = 52, 68, 84, 88, 92, 96
        fa = [100, 124]
        kslot = {s: 2 * s for s in range(11)}
        kslot.update({11: 0, 12: 2, 13: 4, 14: 6, 15: 8})
        for s in range(11, 16):
            self.KV[s] = (self.u_qkv(1, s, kslot[s]), self.u_qkv(2, s, kslot[s] + 1))
        qslot = [10, 11, 12, 13, 14, 15, 16, 17, 18, 19, 20, 21, 0, 1, 2, 3]
        Q = [self.u_qkv(0, s, qslot[s]) for s in range(16)]
        self.oslot = list(range(4, 20))
        self.O = [self.u_wo(s, self.oslot[s]) for s in range(16)]
        self.w1slot = {}
        self.W1 = {}
        for i, sl in enumerate([20, 21, 0, 1, 2, 3]):
            self.w1slot[(0, i)] = sl
            self.W1[(0, i)] = self.u_w1(0, i, sl)
        refill = {4: [u for s in range(11, 15) for u in self.KV[s]],
                  8: list(self.KV[15]) + Q[0:6],
                  12: Q[6:14]}

        def reads(s):
            b = fa[s & 1]
            return (self.tr16(('v', b + 16), kslot[s]) + self.areads(vA, b, s)[:1] + self.tr16(('v', b + 20), kslot[s] + 1)
                    + self.areads(vA, b, s)[1:])

        def mf(s):
            b = fa[s & 1]
            c = (lambda r: '0') if s == 0 else (lambda r: vr(r, 4))
            M = 'v_mfma_f32_16x16x32_bf16 %s, %s, %s, %s'
            wk, wv, one = vr(b + 16, 4), vr(b + 20, 4), vr(ONES, 4)
            out = [M % (vr(csK, 4), one, wk, c(csK)), M % (vr(accK, 4), vr(b, 4), wk, c(accK)),
                   M % (vr(SUM, 4), one, vr(b, 4), c(SUM)), M % (vr(GRAM, 4), vr(b, 4), vr(b, 4), c(GRAM)),
                   M % (vr(csV, 4), one, wv, c(csV)), M % (vr(accV, 4), vr(b, 4), wv, c(accV))]
            for t in range(1, 4):
                out.append(M % (vr(accK + 4 * t, 4), vr(b + 4 * t, 4), wk, c(accK + 4 * t)))
                out.append(M % (vr(accV + 4 * t, 4), vr(b + 4 * t, 4), wv, c(accV + 4 * t)))
            return out

        A.wait_vm(self.X[3].seq)
        self.barrier()
        A('s_or_b32 %s, %s, %s' % (T0, J, W))
        A('s_cmp_lg_u32 %s, 0' % T0)
        A('s_cbranch_scc1 L_noarr')
        A('v_mov_b32 v50, 1')
        A('s_mov_b64 %s, exec' % EXS)
        A('s_mov_b64 exec, 1')
        A.raw('    buffer_atomic_add v50, off, %s, 0' % sDBG)
        A('s_mov_b64 exec, %s' % EXS)
        A.label('L_noarr')
        self.stamp('A0')
        for r in reads(0):
            A(r)
        for s in range(16):
            fill = []
            if s + 1 < 16:
                if (s + 1) % 4 == 0:
                    A.wait_lg()
                    last = s + 4
                    A.wait_vm(max(self.X[last].seq, self.KV[last][1].seq or 0) if self.KV[last][1].seq else self.X[last].seq)
                    self.barrier()
                    self.stamp('A%d' % (s + 1))
                    fill += reads(s + 1) + refill[s + 1]
                else:
                    fill += reads(s + 1)
            self.inter(mf(s), fill)
        self.stamp('Akv')
        A('buffer_load_dword v200, off, %s, 0 sc1' % sDBG)
        self.stats(SUM, GRAM, 100, False)
        A.wait_lg()
        A.wait_vm(Q[7].seq)
        self.barrier()
        for u in Q[14:16] + self.O[0:6]:
            u()
        a4, b4, u0 = 148, 164, 112
        A('s_lshl_b32 %s, %s, 6' % (T0, W))
        A('v_lshrrev_b32 v100, 4, %s' % vL)
        A('v_lshlrev_b32 v100, 4, v100')
        for t in range(4):
            A('s_xor_b32 %s, %s, %d' % (T0, W, t))
            A('s_lshl_b32 %s, %s, 6' % (T0, T0))
            A('s_add_u32 %s, %s, %d' % (T0, T0, MISC))
            A('v_add_u32 v%d, %s, v100' % (101 + t, T0))
            A('ds_read_b128 %s, v%d' % (vr(a4 + 4 * t, 4), 101 + t))
            A('ds_read_b128 %s, v%d offset:256' % (vr(b4 + 4 * t, 4), 101 + t))
        AB = 188
        self.read_ab_T(AB, 105)
        A('s_lshr_b32 %s, %s, 1' % (T0, HEAD))
        A('s_lshl_b32 %s, %s, 2' % (T1, AQ))
        A('s_sub_u32 %s, %s, %s' % (T0, T0, T1))
        A('s_and_b32 %s, %s, 15' % (T0, T0))
        A('s_lshl_b32 %s, %s, 12' % (T0, T0))
        A('v_lshrrev_b32 v110, 5, %s' % vL)
        A('s_and_b32 %s, %s, 1' % (T1, W))
        A('s_lshl_b32 %s, %s, 1' % (T1, T1))
        A('v_add_u32 v110, %s, v110' % T1)
        A('v_bfe_u32 v111, %s, 3, 1' % vL)
        A('v_mul_u32_u24 v111, 3, v111')
        A('v_xor_b32 v110, v110, v111')
        A('v_lshlrev_b32 v110, 4, v110')
        A('v_and_b32 v111, 15, %s' % vL)
        A('v_lshl_add_u32 v110, v111, 6, v110')
        A('v_bfe_u32 v111, %s, 4, 1' % vL)
        A('v_lshl_add_u32 v110, v111, 3, v110')
        for t in range(4):
            A('s_xor_b32 %s, %s, %d' % (T1, W, t))
            A('s_lshl_b32 %s, %s, 10' % (T1, T1))
            A('s_add_u32 %s, %s, %s' % (T1, T1, T0))
            A('v_add_u32 v%d, %s, v110' % (196 + t, T1))
            A('ds_read_b64 %s, v%d' % (vr(XRES + 2 * t, 2), 196 + t))
        PK, VV = 132, 140
        for t in range(4):
            for h in range(2):
                i = 4 * t + 2 * h
                A('v_pk_fma_f32 %s, %s, %s, %s' % (vr(u0 + i, 2), vr(b4 + i, 2), vr(csK, 2), C_E6))
                A('v_pk_fma_f32 %s, %s, %s, %s' % (vr(accK + i, 2), vr(a4 + i, 2), vr(accK + i, 2), vr(u0 + i, 2)))
        self.phi_pairs([(PK + i, accK + 2 * i, u0 + 2 * i) for i in range(8)])
        for t in range(4):
            for h in range(2):
                i = 4 * t + 2 * h
                A('v_pk_mul_f32 %s, %s, %s' % (vr(u0 + i, 2), vr(b4 + i, 2), vr(csV, 2)))
                A('v_pk_fma_f32 %s, %s, %s, %s' % (vr(accV + i, 2), vr(a4 + i, 2), vr(accV + i, 2), vr(u0 + i, 2)))
                A('v_cvt_pk_bf16_f32 v%d, v%d, v%d' % (VV + i // 2, accV + i, accV + i + 1))
        KVP, ZP = 112, 116
        M = 'v_mfma_f32_16x16x32_bf16 %s, %s, %s, %s'
        A(M % (vr(KVP, 4), vr(PK, 4), vr(VV, 4), '0'))
        A(M % (vr(ZP, 4), vr(PK, 4), vr(ONES, 4), '0'))
        A(M % (vr(KVP, 4), vr(PK + 4, 4), vr(VV + 4, 4), vr(KVP, 4)))
        A(M % (vr(ZP, 4), vr(PK + 4, 4), vr(ONES, 4), vr(ZP, 4)))
        A('v_mov_b32 v124, %d' % BIG)
        A('v_lshrrev_b32 v125, 5, %s' % vL)
        A('v_and_b32 v126, 15, %s' % vL)
        A('v_lshlrev_b32 v125, 8, v125')
        A('v_lshl_add_u32 v125, v126, 4, v125')
        A('v_and_b32 v127, 16, %s' % vL)
        A('v_cmp_eq_u32 vcc, 0, v127')
        A('v_lshrrev_b32 v127, 4, %s' % vL)
        A('v_lshlrev_b32 v127, 9, v127')
        A('v_cndmask_b32 v125, v124, v125, vcc')
        A('v_cmp_eq_u32 vcc, 0, v126')
        A('s_lshl_b32 %s, %s, 14' % (T2, HEAD))
        A('s_lshl_b32 %s, %s, 9' % (T0, G))
        A('v_cndmask_b32 v127, v124, v127, vcc')
        A('s_add_u32 %s, %s, %s' % (T4, T2, T0))
        A('s_lshl_b32 %s, %s, 11' % (T3, HEAD))
        A('s_add_u32 %s, %s, %d' % (T3, T3, Z_OFF))
        A('s_lshl_b32 %s, %s, 4' % (T0, G))
        A('s_add_u32 %s, %s, %s' % (T5, T3, T0))
        lab = self.newlab('c0')
        A('v_cmp_gt_u32 vcc, 32, v200')
        A('s_cbranch_vccz %s_x' % lab)
        A.label(lab)
        A.raw('    buffer_load_dword v200, off, %s, 0 sc1' % sDBG)
        A.raw('    s_waitcnt vmcnt(0)')
        A('v_cmp_gt_u32 vcc, 32, v200')
        self.spin_tail(lab)
        A('v_cvt_pk_bf16_f32 v120, v%d, v%d' % (KVP, KVP + 1))
        A('v_cvt_pk_bf16_f32 v121, v%d, v%d' % (KVP + 2, KVP + 3))
        for r in range(4):
            A('v_min_u32 v%d, -2, v%d' % (ZP + r, ZP + r))
        A('v_min_u32 v120, -2, v120')
        A('v_min_u32 v121, -2, v121')
        A('v_mov_b32 v122, v120')
        A('v_mov_b32 v123, v121')
        self.pairswap(120)
        A('buffer_store_dwordx4 v[120:123], v125, %s, %s offen sc1' % (sWS, T4))
        A('buffer_store_dwordx4 %s, v127, %s, %s offen sc1' % (vr(ZP, 4), sWS, T5))
        A('s_getreg_b32 %s, hwreg(HW_REG_XCC_ID)' % T0)
        A('s_and_b32 %s, %s, 15' % (T0, T0))
        A('s_add_u32 %s, %s, 1' % (FAST, T0))
        A('v_mov_b32 v128, %s' % FAST)
        A('v_cmp_eq_u32 vcc, 0, v0')
        A('s_lshl_b32 %s, %s, 2' % (T0, J))
        A('v_mov_b32 v129, %s' % T0)
        A('v_cndmask_b32 v129, v124, v129, vcc')
        A('buffer_store_dword v128, v129, %s, %s offen sc1' % (sWS, SYB))
        self.stamp('pubkv')
        accQ, csQ = 52, 84
        fq = [100, 124]

        def qreads(s):
            b = fq[s & 1]
            return self.tr16(('v', b + 16), qslot[s]) + self.areads(vA, b, s)

        def qmf(s):
            b = fq[s & 1]
            c = (lambda r: '0') if s == 0 else (lambda r: vr(r, 4))
            wq = vr(b + 16, 4)
            return [M % (vr(csQ, 4), wq, vr(ONES, 4), c(csQ))] + \
                   [M % (vr(accQ + 4 * t, 4), wq, vr(b + 4 * t, 4), c(accQ + 4 * t)) for t in range(4)]
        for r in qreads(0):
            A(r)
        for s in range(16):
            fill = []
            if s + 1 < 16:
                if s + 1 == 8:
                    A.wait_lg()
                    A.wait_vm(Q[15].seq)
                    self.barrier()
                    fill += qreads(s + 1) + self.O[6:14]
                else:
                    fill += qreads(s + 1)
            self.inter(qmf(s), fill)
        A.wait_lg()
        self.barrier()
        for u in self.O[14:16] + [self.W1[(0, i)] for i in range(6)]:
            u()
        self.stamp('Aq')
        PQ = 180
        for t in range(4):
            for h in range(2):
                i = 4 * t + 2 * h
                ab = vr(AB + 2 * t, 2)
                A('v_pk_fma_f32 %s, %s, %s, %s op_sel:[0,1,0] op_sel_hi:[1,1,1]' % (vr(u0 + i, 2), vr(csQ + 2 * h, 2), ab, C_E6))
                A('v_pk_fma_f32 %s, %s, %s, %s op_sel:[0,0,0] op_sel_hi:[1,0,1]' % (vr(accQ + i, 2), vr(accQ + i, 2), ab, vr(u0 + i, 2)))
        self.phi_pairs([(PQ + i, accQ + 2 * i, u0 + 2 * i) for i in range(8)])
        KL, ZL, IDS = 100, 164, 172
        A('v_and_b32 v173, 15, %s' % vL)
        A('v_lshrrev_b32 v174, 4, %s' % vL)
        A('v_lshlrev_b32 v174, 9, v174')
        A('v_lshl_add_u32 v173, v173, 4, v174')
        A('v_and_b32 v174, 7, %s' % vL)
        A('v_lshlrev_b32 v174, 2, v174')
        lab = self.newlab('kv')
        A.wait_lg()
        A.fence()
        self.stamp('phiq')
        A.label(lab)
        A('buffer_load_dwordx4 %s, v173, %s, %s offen sc1' % (vr(ZL, 4), sWS, T3))
        A('buffer_load_dwordx4 %s, v173, %s, %s offen offset:256 sc1' % (vr(ZL + 4, 4), sWS, T3))
        A('buffer_load_dword v%d, v174, %s, %s offen sc1' % (IDS, sWS, SYB))
        for i in range(16):
            if i % 4 == 0:
                A('s_add_u32 %s, %s, %d' % (T0, T2, KV_OFF + i * 1024))
            A('buffer_load_dwordx4 %s, v%d, %s, %s offen offset:%d sc1' % (vr(KL + 4 * i, 4), vL16, sWS, T0, (i % 4) * 1024))
        A('v_max3_u32 v175, v%d, v%d, v%d' % (ZL, ZL + 1, ZL + 2))
        rest = list(range(ZL + 3, ZL + 8)) + list(range(KL, KL + 64))
        A('v_add_u32 v176, -1, v%d' % IDS)
        rest = [176] + rest
        for i in range(0, len(rest), 2):
            A('v_max3_u32 v175, v175, v%d, v%d' % (rest[i], rest[i + 1]))
        A.force_wait('vmcnt(0)')
        A('v_cmp_eq_u32 vcc, -1, v175')
        self.spin_tail(lab)
        self.stamp('gath')
        KS = 52
        for i in range(16):
            A(M % (vr(KS, 4), vr(SEL, 4), vr(KL + 4 * i, 4), '0' if i == 0 else vr(KS, 4)))
            if i < 4:
                A('v_add_f32 v%d, v%d, v%d' % (ZL + i, ZL + i, ZL + 4 + i))
            elif i >= 5 and i % 2 == 1 and i < 13:
                for r in range(4):
                    A('v_add_f32_dpp v%d, v%d, v%d row_ror:%d row_mask:0xf bank_mask:0xf' % (
                        ZL + r, ZL + r, ZL + r, 1 << ((i - 5) // 2)))
        A('v_cmp_ne_u32 vcc, %s, v%d' % (FAST, IDS))
        A('v_cvt_pk_bf16_f32 v58, v%d, v%d' % (ZL, ZL + 1))
        A('v_cvt_pk_bf16_f32 v59, v%d, v%d' % (ZL + 2, ZL + 3))
        A('s_cmp_eq_u64 vcc, 0')
        A('s_cselect_b32 %s, 1, 0' % FAST)
        A('v_cvt_pk_bf16_f32 v56, v%d, v%d' % (KS, KS + 1))
        A('v_cvt_pk_bf16_f32 v57, v%d, v%d' % (KS + 2, KS + 3))
        NUM, DEN = 60, 76
        M16 = 'v_mfma_f32_16x16x16_bf16 %s, %s, %s, 0'
        for t in range(4):
            A(M16 % (vr(DEN + 4 * t, 4), 'v[58:59]', vr(PQ + 2 * t, 2)))
        for t in range(4):
            A(M16 % (vr(NUM + 4 * t, 4), 'v[56:57]', vr(PQ + 2 * t, 2)))
        for t in range(4):
            A('v_add_f32 v%d, s4, v%d' % (DEN + 4 * t, DEN + 4 * t))
        for t in range(4):
            A('v_rcp_f32 v%d, v%d' % (DEN + 4 * t, DEN + 4 * t))
        OP = 92
        for t in range(4):
            for h in range(2):
                i = NUM + 4 * t + 2 * h
                A('v_pk_mul_f32 %s, %s, %s op_sel_hi:[1,0]' % (vr(i, 2), vr(i, 2), vr(DEN + 4 * t, 2)))
        for t in range(4):
            for h in range(2):
                i = NUM + 4 * t + 2 * h
                A('v_cvt_pk_bf16_f32 v%d, v%d, v%d' % (OP + 2 * t + h, i, i + 1))
        self.pairswap(OP)
        self.pairswap(OP + 4)
        A('s_mov_b32 %s, %d' % (T0, O_OFF))
        self.stores(['buffer_store_dwordx4 %s, v%d, %s, %s offen' % (vr(OP, 4), vOst0, sWS, T0),
                     'buffer_store_dwordx4 %s, v%d, %s, %s offen' % (vr(OP + 4, 4), vOst1, sWS, T0)])
        A.wait_all()
        self.barrier()
        self.set_flag(32)
        self.stamp('pubo')
        for s in range(16):
            for r in self.tr16(('a', 192 + 4 * s), self.oslot[s]):
                A(r)
        for i in range(6):
            for r in self.tr16(('a', 4 * i), self.w1slot[(0, i)]):
                A(r)
        A.wait_lg()
        self.barrier()

    def img_pass(self, units, mf, hooks=None, staged=True):
        A = self.A
        fb = [100, 116]
        hooks = hooks or {}
        if staged:
            A.wait_vm(units[3].seq)
            self.barrier()
        for r in self.areads(vH, fb[0], 0):
            A(r)
        for s in range(16):
            fill = []
            if s + 1 < 16:
                if staged and (s + 1) % 4 == 0:
                    A.wait_lg()
                    A.wait_vm(units[s + 4].seq)
                    self.barrier()
                fill += self.areads(vH, fb[(s + 1) & 1], s + 1)
            pre, extra = hooks.get(s, (None, []))
            if pre:
                pre()
            self.inter(mf(s, fb[s & 1]), fill + list(extra))

    def phaseB(self):
        A = self.A
        M = 'v_mfma_f32_16x16x32_bf16 %s, %s, %s, %s'
        self.wait_flags(32)
        self.stamp('gotO')
        U = [self.u_img(O_OFF, s) for s in range(16)]
        for u in U:
            u()
        todo = [(0, i) for i in range(6, 16)] + [(1, i) for i in range(12)]
        for sl, k in enumerate(todo):
            self.w1slot[k] = sl
            self.W1[k] = self.u_w1(k[0], k[1], sl)
            self.W1[k]()
        acc = 52

        def mf(s, b):
            return [M % (vr(acc + 4 * t, 4), ar(192 + 4 * s, 4), vr(b + 4 * t, 4), '0' if s == 0 else vr(acc + 4 * t, 4))
                    for t in range(4)]
        self.img_pass(U, mf)
        self.stamp('Bgemm')
        x = 68
        for i in range(8):
            A('v_lshlrev_b32 v%d, 16, v%d' % (x + 2 * i, XRES + i))
            A('v_and_b32 v%d, %s, v%d' % (x + 2 * i + 1, HI16, XRES + i))
        HP = 92
        for i in range(8):
            A('v_pk_add_f32 %s, %s, %s' % (vr(acc + 2 * i, 2), vr(acc + 2 * i, 2), vr(x + 2 * i, 2)))
        for i in range(8):
            A('v_cvt_pk_bf16_f32 v%d, v%d, v%d' % (HP + i, acc + 2 * i, acc + 2 * i + 1))
        self.pairswap(HP)
        self.pairswap(HP + 4)
        A('s_mov_b32 %s, %d' % (T0, H_OFF))
        self.stores(['buffer_store_dwordx4 %s, v%d, %s, %s offen' % (vr(HP, 4), vOst0, sWS, T0),
                     'buffer_store_dwordx4 %s, v%d, %s, %s offen' % (vr(HP + 4, 4), vOst1, sWS, T0)])
        A.wait_all()
        self.barrier()
        self.set_flag(64)
        self.stamp('pubh')
        for k in todo:
            for r in self.tr16(('a', (k[0] * 16 + k[1]) * 4), self.w1slot[k]):
                A(r)
        A.wait_lg()
        self.barrier()

    def w2_unit(self, p):
        def go():
            A = self.A
            if p < 11:
                base, off = T4, p * 2048
            elif p < 19:
                base, off = T5, (p - 11) * 2048
            else:
                base, off = T4, (p - 19) * 2048
            A('s_add_u32 m0, %s, %d' % (base, off))
            A('s_nop 0')
            A('buffer_load_dwordx4 v%d, %s, %s offen lds' % (vW2g, sW2, T2))
            A('s_add_u32 m0, %s, %d' % (base, off + 1024))
            A('s_add_u32 %s, %s, 8192' % (T0, T2))
            go.seq = A('buffer_load_dwordx4 v%d, %s, %s offen lds' % (vW2g, sW2, T0))
            A('s_add_u32 %s, %s, 16384' % (T2, T2))
            A('s_cmp_eq_u32 %s, %s' % (T2, T3))
            A('s_cselect_b32 %s, %s, %s' % (T2, sQq[0], T2))
        go.seq = None
        return go

    def w2_tr(self, p):
        if p < 11:
            r, off = self.vTring, p * 2048
        elif p < 19:
            r, off = self.vTr0, (p - 11) * 2048
        else:
            r, off = self.vTring, (p - 19) * 2048
        out = []
        for ct in range(2):
            for kq in range(2):
                d = p * 8 + ct * 4 + kq * 2
                out.append('ds_read_b64_tr_b16 a[%d:%d], v%d offset:%d' % (d, d + 1, r, off + kq * 512 + ct * 256))
        return out

    def phaseC(self):
        A = self.A
        M = 'v_mfma_f32_16x16x32_bf16 %s, %s, %s, %s'
        self.wait_flags(64)
        self.stamp('gotH')
        U = [self.u_img(H_OFF, s) for s in range(16)]
        for u in U:
            u()
        todo = [(1, i) for i in range(12, 16)] + [(2, i) for i in range(16)]
        for sl, k in enumerate(todo):
            self.w1slot[k] = sl
            self.W1[k] = self.u_w1(k[0], k[1], sl)
            self.W1[k]()
        acc = [52, 68, 84]
        cs = [132, 136, 140]
        SUM, GRAM = 144, 148

        def mf1(s, b):
            c = (lambda r: '0') if s == 0 else (lambda r: vr(r, 4))
            w = ar(4 * s, 4)
            return [M % (vr(cs[0], 4), w, vr(ONES, 4), c(cs[0])), M % (vr(acc[0], 4), w, vr(b, 4), c(acc[0])),
                    M % (vr(SUM, 4), vr(ONES, 4), vr(b, 4), c(SUM)), M % (vr(GRAM, 4), vr(b, 4), vr(b, 4), c(GRAM))] + \
                   [M % (vr(acc[0] + 4 * t, 4), w, vr(b + 4 * t, 4), c(acc[0] + 4 * t)) for t in range(1, 4)]
        self.img_pass(U, mf1)
        self.stamp('C1')
        self.stats(SUM, GRAM, 152, True)
        A('s_mul_i32 %s, %s, 11' % (T0, AQ))
        A('s_add_u32 %s, %s, 1' % (T0, T0))
        A('s_lshr_b32 %s, %s, 1' % (T0, T0))
        A('s_mul_i32 %s, %s, 22' % (T1, W))
        A('s_add_u32 %s, %s, %s' % (T0, T0, T1))
        A('s_lshl_b32 %s, %s, 7' % (T3, J))
        A('s_lshl_b32 %s, %s, 14' % (T2, T0))
        A('s_add_u32 %s, %s, %s' % (T2, T2, T3))
        A('s_lshl_b32 %s, %s, 14' % (sQq[0], T1))
        A('s_add_u32 %s, %s, %s' % (sQq[0], sQq[0], T3))
        A('s_add_u32 %s, %s, %d' % (T3, sQq[0], 22 * 16384))
        A('s_mul_i32 %s, %s, %d' % (sQx[0], G, HH_G))
        A('s_add_u32 %s, %s, %d' % (sQx[0], sQx[0], HH_OFF))
        A('s_lshl_b32 %s, %s, 10' % (sQx[1], T0))
        A('s_add_u32 %s, %s, %s' % (sQx[1], sQx[1], sQx[0]))
        A('s_lshl_b32 %s, %s, 10' % (sQx[2], T1))
        A('s_add_u32 %s, %s, %s' % (sQx[2], sQx[2], sQx[0]))
        A('s_add_u32 %s, %s, %d' % (sQx[3], sQx[2], 22 * 1024))
        A('s_mul_i32 %s, %s, 22528' % (T4, W))
        A('s_add_u32 %s, %s, %d' % (T4, T4, RING))
        A('s_lshl_b32 %s, %s, 14' % (T5, W))
        self.vTring, self.vTr0 = vXg, vWq
        A('v_add_u32 v%d, %s, v%d' % (self.vTring, T4, vT32))
        A('v_add_u32 v%d, %s, v%d' % (self.vTr0, T5, vT32))
        A.wait_lg()
        A.wait_vm(self.W1[todo[-1]].seq)
        self.barrier()
        AB = 164
        self.read_ab_T(AB, 152)
        W2 = [self.w2_unit(p) for p in range(22)]
        self.W2 = W2
        trs = {k: self.tr16(('a', (k[0] * 16 + k[1]) * 4), self.w1slot[k]) for k in todo}
        for r in trs[(2, 0)]:
            A(r)
        order = [(2, i) for i in range(1, 16)] + [(1, i) for i in range(12, 16)]
        allr = [r for k in order for r in trs[k]]

        def c2():
            A.wait_lg()
            self.barrier()
        hooks = {0: (None, allr[0:14]), 1: (None, allr[14:26]), 2: (None, allr[26:38]),
                 4: (c2, W2[0:2]), 5: (None, W2[2:4]), 6: (None, W2[4:6]), 7: (None, W2[6:8]), 8: (None, W2[8:10]),
                 9: (None, W2[10:11])}

        def mf2(s, b):
            c = (lambda r: '0') if s == 0 else (lambda r: vr(r, 4))
            out = []
            for k in (1, 2):
                w = ar((k * 16 + s) * 4, 4)
                out.append(M % (vr(cs[k], 4), w, vr(ONES, 4), c(cs[k])))
                out += [M % (vr(acc[k] + 4 * t, 4), w, vr(b + 4 * t, 4), c(acc[k] + 4 * t)) for t in range(4)]
            return out
        self.img_pass(U, mf2, hooks, staged=False)
        self.stamp('C2')
        HRES = XRES
        A('s_lshl_b32 %s, %s, 1' % (T0, J))
        A('s_lshl_b32 %s, %s, 2' % (T1, AQ))
        A('s_sub_u32 %s, %s, %s' % (T0, T0, T1))
        A('s_and_b32 %s, %s, 15' % (T0, T0))
        A('s_lshl_b32 %s, %s, 12' % (T0, T0))
        A('s_lshr_b32 %s, %s, 1' % (T1, W))
        A('s_lshl_b32 %s, %s, 10' % (T1, T1))
        A('s_add_u32 %s, %s, %s' % (T0, T0, T1))
        A('s_and_b32 %s, %s, 1' % (T1, W))
        A('s_lshl_b32 %s, %s, 7' % (T1, T1))
        A('s_add_u32 %s, %s, %s' % (T0, T0, T1))
        A('v_bfe_u32 v100, %s, 2, 1' % vL)
        A('v_lshlrev_b32 v100, 12, v100')
        A('v_and_b32 v101, 3, %s' % vL)
        A('v_lshl_add_u32 v100, v101, 8, v100')
        A('v_lshrrev_b32 v101, 3, %s' % vL)
        A('v_lshl_add_u32 v100, v101, 4, v100')
        A('v_add_u32 v100, %s, v100' % T0)
        A('ds_read_b128 %s, v100' % vr(HRES, 4))
        A('ds_read_b128 %s, v100 offset:2048' % vr(HRES + 4, 4))
        A.wait_lg()
        self.barrier()
        for p in range(11, 19):
            W2[p]()
        A.wait_vm(W2[10].seq)
        for p in range(11):
            for r in self.w2_tr(p):
                A(r)
        B1F = 100
        for c in range(3):
            for h in range(2):
                A('v_lshlrev_b32 v%d, 16, v%d' % (B1F + 4 * c + 2 * h, B1P + 2 * c + h))
                A('v_and_b32 v%d, %s, v%d' % (B1F + 4 * c + 2 * h + 1, HI16, B1P + 2 * c + h))
        A.wait_lg()
        for p in range(19, 22):
            W2[p]()
        self.stamp('w2a')
        u, e = 112, 172
        HP = 188
        for c in range(3):
            prs = [(t, h) for t in range(4) for h in range(2)]
            xs = [acc[c] + 4 * t + 2 * h for t, h in prs]
            for i, (t, h) in enumerate(prs):
                ab = vr(AB + 2 * t, 2)
                A('v_pk_fma_f32 %s, %s, %s, %s op_sel:[0,1,0] op_sel_hi:[1,1,1]' % (
                    vr(u + 2 * i, 2), vr(cs[c] + 2 * h, 2), ab, vr(B1F + 4 * c + 2 * h, 2)))
            for i, (t, h) in enumerate(prs):
                ab = vr(AB + 2 * t, 2)
                A('v_pk_fma_f32 %s, %s, %s, %s op_sel:[0,0,0] op_sel_hi:[1,0,1]' % (
                    vr(xs[i], 2), vr(xs[i], 2), ab, vr(u + 2 * i, 2)))
            for i in range(8):
                A('v_pk_mul_f32 %s, %s, %s' % (vr(e + 2 * i, 2), vr(xs[i], 2), vr(xs[i], 2)))
            for i in range(8):
                A('v_pk_fma_f32 %s, %s, %s, %s op_sel:[0,0,1] op_sel_hi:[1,0,1]' % (vr(e + 2 * i, 2), vr(e + 2 * i, 2), C_GELU, C_GELU))
            for i in range(8):
                A('v_pk_mul_f32 %s, %s, %s' % (vr(e + 2 * i, 2), vr(e + 2 * i, 2), vr(xs[i], 2)))
            for i in range(16):
                A('v_exp_f32 v%d, v%d' % (e + i, e + i))
            for i in range(8):
                A('v_pk_add_f32 %s, %s, 1.0 op_sel_hi:[1,0]' % (vr(e + 2 * i, 2), vr(e + 2 * i, 2)))
            for i in range(16):
                A('v_rcp_f32 v%d, v%d' % (e + i, e + i))
            for i in range(8):
                A('v_pk_mul_f32 %s, %s, %s' % (vr(xs[i], 2), vr(xs[i], 2), vr(e + 2 * i, 2)))
            hp = HP + 8 * c
            for i in range(8):
                A('v_cvt_pk_bf16_f32 v%d, v%d, v%d' % (hp + i, xs[i], xs[i] + 1))
            self.pairswap(hp)
            self.pairswap(hp + 4)
            A('s_add_u32 %s, %s, %d' % (T0, W, 4 * c))
            A('s_cmp_lt_u32 %s, %s' % (T0, NT))
            A('s_cselect_b32 %s, %s, %d' % (T1, sQx[0], BIG))
            A('s_add_u32 %s, %s, %s' % (T0, T0, TILE0))
            A('s_lshl_b32 %s, %s, 10' % (T0, T0))
            A('s_add_u32 %s, %s, %s' % (T0, T0, T1))
            A('s_lshr_b32 %s, %s, 1' % (T1, W))
            A('s_mul_i32 %s, %s, %d' % (T1, T1, 86 * 1024))
            A('s_add_u32 %s, %s, %s' % (sQo[0], T0, T1))
            A('s_sub_u32 %s, %d, %s' % (T1, 86 * 1024, T1))
            A('s_add_u32 %s, %s, %s' % (sQo[1], T0, T1))
            self.stores(['buffer_store_dwordx4 %s, v%d, %s, %s offen' % (vr(hp, 4), vHHst, sWS, sQo[0]),
                         'buffer_store_dwordx4 %s, v%d, %s, %s offen' % (vr(hp + 4, 4), vHHst, sWS, sQo[1])])
        self.stamp('gelu')
        A.wait_all()
        self.barrier()
        self.set_flag(96)
        self.stamp('pubhh')
        for p in range(11, 22):
            for r in self.w2_tr(p):
                A(r)

    def phaseD(self):
        A = self.A
        M = 'v_mfma_f32_32x32x16_bf16 %s, %s, %s, %s'
        HRES = XRES
        wa = [52, 53, 54, 55]
        ra = [56, 57, 58, 59]
        A('v_and_b32 v60, 31, %s' % vL)
        A('v_lshrrev_b32 v61, 5, %s' % vL)
        A('v_and_b32 v62, 7, %s' % vL)
        A('s_add_u32 %s, %s, 6144' % (T0, T4))
        for b in range(4):
            A('v_add_u32 v63, %d, v61' % (2 * b))
            A('v_xor_b32 v63, v63, v62')
            A('v_lshlrev_b32 v63, 4, v63')
            A('v_lshl_add_u32 v63, v60, 8, v63')
            A('v_add_u32 v%d, %s, v63' % (wa[b], T0))
        A('v_lshrrev_b32 v61, 3, %s' % vL)
        A('v_lshlrev_b32 v63, 1, v62')
        A('v_xor_b32 v63, v63, v61')
        A('v_lshlrev_b32 v63, 4, v63')
        A('v_lshl_add_u32 v63, v61, 8, v63')
        A('s_lshl_b32 %s, %s, 11' % (T0, W))
        A('s_add_u32 %s, %s, %d' % (T0, T0, RING + 6144))
        A('v_add_u32 v%d, %s, v63' % (ra[0], T0))
        A('v_xor_b32 v%d, 16, v%d' % (ra[1], ra[0]))
        A('v_add_u32 v%d, %d, v%d' % (ra[2], 2 * 22528, ra[0]))
        A('v_add_u32 v%d, %d, v%d' % (ra[3], 2 * 22528, ra[1]))
        A('v_lshlrev_b32 v63, 4, v62')
        A('v_lshl_add_u32 v63, v61, 10, v63')
        A('s_lshl_b32 %s, %s, 16' % (T0, G))
        A('s_lshl_b32 %s, %s, 13' % (T1, W))
        A('s_add_u32 %s, %s, %s' % (T0, T0, T1))
        A('s_lshl_b32 %s, %s, 7' % (T1, J))
        A('s_add_u32 %s, %s, %s' % (T0, T0, T1))
        A('v_add_u32 v60, %s, v63' % T0)
        A('s_add_u32 %s, %s, %d' % (sQo[2], sQx[0], 86 * 1024))
        self.wait_flags(96)
        self.stamp('gotHH')
        hb = [64, 152]
        for T in range(2):
            A('s_mov_b32 %s, %s' % (T2, sQx[1]))
            for p in range(22):
                A('s_cmp_lt_u32 %s, %s' % (T2, sQo[2]))
                A('s_cselect_b32 %s, %s, %d' % (T0, T2, BIG))
                if T:
                    A('s_add_u32 %s, %s, %d' % (T0, T0, 86 * 1024))
                A('buffer_load_dwordx4 %s, v%d, %s, %s offen sc1' % (vr(hb[T] + 4 * p, 4), vL16, sWS, T0))
                A('s_add_u32 %s, %s, 1024' % (T2, T2))
                A('s_cmp_eq_u32 %s, %s' % (T2, sQx[3]))
                A('s_cselect_b32 %s, %s, %s' % (T2, sQx[2], T2))
        acc = [176, 208]
        B2F = 240
        for i in range(4):
            A('v_lshlrev_b32 v%d, 16, v%d' % (B2F + 2 * i, B2P + i))
            A('v_and_b32 v%d, %s, v%d' % (B2F + 2 * i + 1, HI16, B2P + i))

        def writes(T):
            return ['ds_write_b128 v%d, %s offset:%d' % (wa[b], ar(acc[T] + 16 * ct + 4 * b, 4), T * 8192 + ct * 128)
                    for ct in range(2) for b in range(4)]

        def finish(T, buf):
            for src in range(4):
                for k in range(2):
                    A('ds_read_b128 %s, v%d offset:%d' % (vr(buf + 8 * src + 4 * k, 4), ra[2 * (src >> 1) + k],
                                                          (src & 1) * 22528 + T * 8192))
            hf = buf + 32
            for i in range(4):
                A('v_lshlrev_b32 v%d, 16, v%d' % (hf + 2 * i, HRES + 4 * T + i))
                A('v_and_b32 v%d, %s, v%d' % (hf + 2 * i + 1, HI16, HRES + 4 * T + i))
            for i in range(4):
                A('v_pk_add_f32 %s, %s, %s' % (vr(hf + 2 * i, 2), vr(hf + 2 * i, 2), vr(B2F + 2 * i, 2)))
            for src in range(4):
                for i in range(4):
                    A('v_pk_add_f32 %s, %s, %s' % (vr(hf + 2 * i, 2), vr(hf + 2 * i, 2), vr(buf + 8 * src + 2 * i, 2)))
            for i in range(4):
                A('v_cvt_pk_bf16_f32 v%d, v%d, v%d' % (buf + i, hf + 2 * i, hf + 2 * i + 1))
            if T:
                A('v_add_u32 v61, 0x8000, v60')
            A('buffer_store_dwordx4 %s, v%d, %s, 0 offen' % (vr(buf, 4), 60 + T, sOUT))

        for T in range(2):
            wr = writes(0) if T else []
            for p in range(22):
                for ct in range(2):
                    d = ar(acc[T] + 16 * ct, 16)
                    A(M % (d, ar(p * 8 + 4 * ct, 4), vr(hb[T] + 4 * p, 4), '0' if p == 0 else d))
                if T and p >= 1 and wr:
                    A(wr.pop(0))
            self.stamp('D%d' % T)
        for w in writes(1):
            A(w)
        A.wait_lg()
        self.barrier()
        finish(0, 64)
        finish(1, 112)
        self.stamp('end')
        if self.pad:
            A('s_add_u32 s100, s100, %d' % self.pad)
            A.label('L_pad')
            A('s_memrealtime s[98:99]')
            A.force_wait('lgkmcnt(0)')
            A('s_sub_u32 s98, s98, s100')
            A('s_cmp_lt_i32 s98, 0')
            A('s_cbranch_scc1 L_pad')
        if self.stamps == 2:
            A('v_readlane_b32 %s, v%d, 0' % (T0, VSTAMP))
            A('v_subrev_u32 v51, %s, v%d' % (T0, VSTAMP))
            A('v_lshlrev_b32 v50, 2, v0')
            A('v_cmp_eq_u32 vcc, 0, v0')
            A('v_mov_b32 v52, %d' % BIG)
            A('v_cndmask_b32 v50, v50, v52, vcc')
            A('s_cmp_lg_u32 s2, 77')
            A('s_cbranch_scc1 L_end')
            A('buffer_store_dword v51, v50, %s, 0 offen' % sDBG)
        elif self.stamps:
            A('s_lshl_b32 %s, s2, 10' % T0)
            A('s_add_u32 %s, %s, %d' % (T0, T0, STAMP_OFF))
            A('v_lshlrev_b32 v50, 2, v0')
            A('buffer_store_dword v%d, v50, %s, %s offen' % (VSTAMP, sWS, T0))

    def build(self):
        A = self.A
        self.prologue()
        self.phaseA()
        self.phaseB()
        self.phaseC()
        self.phaseD()
        A.label('L_end')
        A.raw('    s_endpgm')
        A.label('L_code_end')
        ref = open('cdna_kernels/%s.s.ref' % NAME).read().split('\n')
        head = [l for l in ref if l.startswith(';') and '@launch' not in l and 'Override' not in l and 'grid=ceil' not in l]
        out = '\n'.join(head) + '\n; @launch grid=(256,1,1) block=(256,1,1) lds=%d\n' % LDS_BYTES
        out += '.amdgcn_target "amdgcn-amd-amdhsa--gfx950"\n.set CODE_BYTES, L_code_end - %s - 64\n' % KERN
        out += '.text\n.globl %s\n.p2align 8\n.type %s,@function\n%s:\n' % (KERN, KERN, KERN)
        out += A.text()
        out += '''.section .rodata,"a"
.p2align 6
.amdhsa_kernel %s
  .amdhsa_next_free_vgpr 512
  .amdhsa_next_free_sgpr 102
  .amdhsa_accum_offset 256
  .amdhsa_group_segment_fixed_size 0
  .amdhsa_kernarg_size 88
  .amdhsa_user_sgpr_count 2
  .amdhsa_user_sgpr_kernarg_segment_ptr 1
  .amdhsa_system_sgpr_workgroup_id_x 1
.end_amdhsa_kernel
''' % KERN
        return out


if __name__ == '__main__':
    stamps = 2 if '--dbgstamps' in sys.argv else ('--stamps' in sys.argv)
    fast = '--fast' in sys.argv
    outp = [a for a in sys.argv[1:] if not a.startswith('--')]
    g = Gen(stamps, fast)
    for a in sys.argv:
        if a.startswith('--pad='):
            g.pad = int(a[6:])
    txt = g.build()
    path = outp[0] if outp else 'cdna_kernels/%s.s' % NAME
    open(path, 'w').write(txt)
    if stamps:
        open(path + '.names', 'w').write('\n'.join(g.stnames))
    print('instructions', g.A.count, 'nop states', g.A.nops, file=sys.stderr)
```

```python
import sys, math, struct
from asmlib import Asm

NAME = 'sequential_preLN__linear_attn_block__mixer_channel_mlp__prompt'
KERN = NAME + '_kernel'

KV_OFF = 0x0
Z_OFF = 0x80000
SY_OFF = 0x90000
H_OFF = 0x100000
O_OFF = 0x300000
HH_OFF = 0x500000
HH_G = 2 * 86 * 1024
WS_USE = HH_OFF + 32 * HH_G
STAMP_OFF = 0xB00000
BIG = 0x40000000

RING = 65536
NSLOT = 22
MISC = RING + NSLOT * 4096
LDS_BYTES = 163840


def f32(x):
    return '0x%08x' % struct.unpack('<I', struct.pack('<f', x))[0]


def vr(b, n):
    return 'v[%d:%d]' % (b, b + n - 1) if n > 1 else 'v%d' % b


def ar(b, n):
    return 'a[%d:%d]' % (b, b + n - 1) if n > 1 else 'a%d' % b


sX, sWQ, sWO, sW1, sW2, sOUT, sWS, sB1, sB2, sDBG, sCODE = [
    's[%d:%d]' % (b, b + 3) for b in (28, 32, 36, 40, 44, 48, 52, 56, 60, 64, 68)]
G, J, W, AQ, WL, T0, T1, SPIN = ['s%d' % i for i in range(72, 80)]
sQq = ['s%d' % i for i in range(80, 84)]
sQx = ['s%d' % i for i in range(84, 88)]
sQo = ['s%d' % i for i in range(88, 92)]
sQ1 = ['s%d' % i for i in range(92, 96)]
sQi = ['s%d' % i for i in range(96, 100)]
C_E6, C_L2E, C_GELU = 's[4:5]', 's[6:7]', 's[8:9]'
FAST, SYB, HEAD, NT = 's10', 's11', 's14', 's15'
EXS = 's[12:13]'
T2, T3, T4, T5 = 's16', 's17', 's18', 's19'
DBGP = 's[22:23]'
TILE0 = 's26'
HI16 = 's27'

vL = 'v1'
vA = [2, 3, 4, 5]
vH = [6, 7, 8, 9]
vTrA, vTrB = 10, 11
vXg, vWq, vWo, vW1, vW1m, vLin, vOst0, vOst1, vHHst, vW2g, vT32, vL16 = range(12, 24)
ONES, SEL, XRES, B1P, B2P = 24, 28, 32, 40, 46
VSTAMP = 255


class Gen:
    def __init__(self, stamps=False, fast=False):
        self.A = Asm()
        self.stamps = stamps
        self.fast = fast
        self.nst = 0
        self.stnames = []
        self.lab = 0
        self.pad = 0
        self.padmode = '--padfirst' in sys.argv

    def stamp(self, name):
        if not self.stamps:
            return
        if self.stamps == 2 and name not in ('args', 'issued', 'A0', 'Akv', 'pubkv', 'Aq', 'gath', 'pubo', 'gotO', 'pubh', 'gotH', 'C1', 'C2', 'pubhh', 'gotHH', 'end'):
            return
        A = self.A
        A.wait_lg()
        A('s_memtime s[100:101]')
        A.wait_lg()
        A('v_writelane_b32 v%d, s100, %d' % (VSTAMP, self.nst))
        self.stnames.append(name)
        self.nst += 1

    def newlab(self, p):
        self.lab += 1
        return 'L_%s%d' % (p, self.lab)

    def inter(self, mf, fill, per=2):
        A = self.A
        fill = list(fill)
        for m in mf:
            A(m)
            for _ in range(per):
                if fill:
                    self.run(fill.pop(0))
        for f in fill:
            self.run(f)

    def run(self, f):
        if callable(f):
            return f()
        return self.A(f)

    def slot_addr(self, slot, extra=0):
        off = slot * 4096 + extra
        return (vTrA, off) if off < 65536 else (vTrB, off - 65536)

    def dma_unit(self, srd, vaddr, sbase, const, slot, flags=''):
        def go():
            A = self.A
            A('s_add_u32 m0, %s, %d' % (WL, slot))
            A('s_add_u32 %s, %s, %d' % (T0, sbase, const))
            go.seq = A('buffer_load_dwordx4 v%d, %s, %s offen %slds' % (vaddr, srd, T0, flags))
            return go.seq
        go.seq = None
        return go

    def u_qkv(self, blk, s, slot):
        return self.dma_unit(sWQ, vWq, sQq[s >> 2], (s & 3) * 32 * 3072 + blk * 1024, RING + slot * 4096)

    def u_wo(self, s, slot):
        return self.dma_unit(sWO, vWo, sQo[s >> 2], (s & 3) * 32 * 1024, RING + slot * 4096)

    def u_w1(self, b, s, slot):
        return self.dma_unit(sW1, vW1m if b == 2 else vW1, sQ1[s >> 2], (s & 3) * 32 * 2752 + b * 128,
                             RING + slot * 4096)

    def u_x(self, s):
        return self.dma_unit(sX, vXg, sQx[s >> 2], (s & 3) * 64, s * 4096)

    def u_img(self, base, s):
        return self.dma_unit(sWS, vLin, sQi[s >> 2], base + (s & 3) * 4096, s * 4096, 'sc1 ')

    def tr16(self, dst, slot):
        out = []
        for kq in range(2):
            r, off = self.slot_addr(slot, kq * 512)
            out.append('ds_read_b64_tr_b16 %s[%d:%d], v%d offset:%d' % (dst[0], dst[1] + 2 * kq, dst[1] + 2 * kq + 1, r, off))
        return out

    def areads(self, addr, dst, s):
        return ['ds_read_b128 %s, v%d offset:%d' % (vr(dst + 4 * t, 4), addr[t], s * 4096) for t in range(4)]

    def barrier(self):
        self.A('s_barrier')

    def store(self, text):
        self.A(text + ' sc1')

    def stores(self, lst):
        A = self.A
        if not self.fast:
            seq = None
            for t in lst:
                seq = A(t + ' sc1')
            return seq
        l1, l2 = self.newlab('sl'), self.newlab('sd')
        A('s_cmp_lg_u32 %s, 0' % FAST)
        for t in lst:
            pass
        A.fence()
        A('s_cbranch_scc1 %s' % l1)
        seq = None
        for t in lst:
            seq = A(t + ' sc1')
        A('s_branch %s' % l2)
        A.label(l1)
        for t in lst:
            A.raw('    ' + t)
        A.label(l2)
        return seq

    def spin_tail(self, lab):
        A = self.A
        A('s_cbranch_vccz %s_x' % lab)
        A('s_add_u32 %s, %s, 1' % (SPIN, SPIN))
        A('s_cmp_lt_u32 %s, 0x200000' % SPIN)
        A('s_cbranch_scc1 %s' % lab)
        A.label(lab + '_x')

    def set_flag(self, off):
        A = self.A
        l = self.newlab('fl')
        A('s_cmp_lg_u32 %s, 0' % W)
        A('s_cbranch_scc1 %s' % l)
        A('s_lshl_b32 %s, %s, 2' % (T0, J))
        A('s_add_u32 %s, %s, %s' % (T0, T0, SYB))
        A('v_mov_b32 v50, 1')
        A('s_mov_b64 %s, exec' % EXS)
        A('s_mov_b64 exec, 1')
        t = 'buffer_store_dword v50, off, %s, %s offset:%d' % (sWS, T0, off)
        if self.fast:
            l1, l2 = self.newlab('f1'), self.newlab('f2')
            A('s_cmp_lg_u32 %s, 0' % FAST)
            A('s_cbranch_scc1 %s' % l1)
            A.raw('    ' + t + ' sc1')
            A('s_branch %s' % l2)
            A.label(l1)
            A.raw('    ' + t)
            A.label(l2)
        else:
            A.raw('    ' + t + ' sc1')
        A('s_mov_b64 exec, %s' % EXS)
        A.label(l)

    def wait_flags(self, off):
        A = self.A
        lab = self.newlab('pw')
        A('v_and_b32 v50, 7, %s' % vL)
        A('v_lshlrev_b32 v50, 2, v50')
        A.wait_all()
        A.fence()
        A.label(lab)
        A('buffer_load_dword v51, v50, %s, %s offen offset:%d sc1' % (sWS, SYB, off))
        A.force_wait('vmcnt(0)')
        A('v_cmp_ne_u32 vcc, 1, v51')
        self.spin_tail(lab)

    def rbf2(self, dlo, dhi, a, b, tmp):
        A = self.A
        A('v_cvt_pk_bf16_f32 v%d, v%d, v%d' % (tmp, a, b))
        if dhi is not None:
            A('v_and_b32 v%d, %s, v%d' % (dhi, HI16, tmp))
        A('v_lshlrev_b32 v%d, 16, v%d' % (dlo, tmp))

    def stats(self, SUM, GRAM, t, double):
        A = self.A
        q, mu, var, m, v, s, rs, x, y, a, b, ad = range(t, t + 12)
        A('v_and_b32 v%d, 1, %s' % (x, vL))
        A('v_cmp_eq_u32 vcc, 1, v%d' % x)
        A('v_cndmask_b32 v%d, v%d, v%d, vcc' % (q, GRAM, GRAM + 1))
        A('v_cndmask_b32 v%d, v%d, v%d, vcc' % (y, GRAM + 2, GRAM + 3))
        A('v_and_b32 v%d, 2, %s' % (x, vL))
        A('v_cmp_eq_u32 vcc, 2, v%d' % x)
        A('v_mul_f32 v%d, %s, v%d' % (mu, f32(1.0 / 512), SUM))
        A('v_cndmask_b32 v%d, v%d, v%d, vcc' % (q, q, y))
        A('v_mul_f32 v%d, v%d, v%d' % (x, mu, mu))
        A('v_mul_f32 v%d, %s, v%d' % (q, f32(1.0 / 512), q))
        A('v_sub_f32 v%d, v%d, v%d' % (var, q, x))
        A('v_max_f32 v%d, 0, v%d' % (var, var))
        self.rbf2(m, v, mu, var, x)
        A('v_add_f32 v%d, %s, v%d' % (v, f32(1e-5), v))
        self.rbf2(v, None, v, v, x)
        A('v_sqrt_f32 v%d, v%d' % (s, v))
        self.rbf2(s, None, s, s, x)
        A('v_rcp_f32 v%d, v%d' % (rs, s))
        if not double:
            A('v_mov_b32 v%d, v%d' % (a, rs))
            A('v_mul_f32_e64 v%d, -v%d, v%d' % (b, m, rs))
        else:
            A('v_sub_f32 v%d, v%d, v%d' % (x, mu, m))
            A('v_mul_f32 v%d, v%d, v%d' % (y, var, rs))
            A('v_mul_f32 v%d, v%d, v%d' % (x, x, rs))
            A('v_mul_f32 v%d, v%d, v%d' % (y, y, rs))
            self.rbf2(x, y, x, y, q)
            A('v_add_f32 v%d, %s, v%d' % (y, f32(1e-5), y))
            self.rbf2(y, None, y, y, q)
            A('v_sqrt_f32 v%d, v%d' % (y, y))
            self.rbf2(y, None, y, y, q)
            A('v_rcp_f32 v%d, v%d' % (y, y))
            A('v_fmac_f32 v%d, v%d, v%d' % (x, m, rs))
            A('v_mul_f32 v%d, v%d, v%d' % (a, rs, y))
            A('v_mul_f32_e64 v%d, -v%d, v%d' % (b, x, y))
        A('v_bfe_u32 v%d, %s, 2, 2' % (x, vL))
        A('v_lshrrev_b32 v%d, 4, %s' % (y, vL))
        A('v_cmp_eq_u32 vcc, v%d, v%d' % (x, y))
        A('v_and_b32 v%d, 15, %s' % (ad, vL))
        A('s_lshl_b32 %s, %s, 6' % (T0, W))
        A('s_add_u32 %s, %s, %d' % (T0, T0, MISC))
        A('v_lshl_add_u32 v%d, v%d, 2, %s' % (ad, ad, T0))
        A('s_and_saveexec_b64 %s, vcc' % EXS)
        A('ds_write_b32 v%d, v%d' % (ad, a))
        A('ds_write_b32 v%d, v%d offset:256' % (ad, b))
        A('s_mov_b64 exec, %s' % EXS)

    def read_ab_T(self, dst, tmp):
        A = self.A
        A('v_and_b32 v%d, 15, %s' % (tmp, vL))
        A('v_lshlrev_b32 v%d, 2, v%d' % (tmp, tmp))
        for t in range(4):
            A('s_xor_b32 %s, %s, %d' % (T0, W, t))
            A('s_lshl_b32 %s, %s, 6' % (T0, T0))
            A('s_add_u32 %s, %s, %d' % (T0, T0, MISC))
            A('v_add_u32 v%d, %s, v%d' % (tmp + 1 + t, T0, tmp))
            A('ds_read2_b32 %s, v%d offset0:0 offset1:64' % (vr(dst + 2 * t, 2), tmp + 1 + t))

    def phi_pairs(self, pairs):
        A = self.A
        for d, x, t in pairs:
            A('v_pk_mul_f32 %s, %s, %s' % (vr(t, 2), vr(x, 2), C_L2E))
        for d, x, t in pairs:
            A('v_exp_f32_e64 v%d, v%d clamp' % (t, t))
            A('v_exp_f32_e64 v%d, v%d clamp' % (t + 1, t + 1))
        for d, x, t in pairs:
            A('v_max_f32 v%d, s4, v%d' % (x, x))
            A('v_max_f32 v%d, s4, v%d' % (x + 1, x + 1))
        for d, x, t in pairs:
            A('v_pk_add_f32 %s, %s, %s' % (vr(x, 2), vr(x, 2), vr(t, 2)))
        for d, x, t in pairs:
            A('v_cvt_pk_bf16_f32 v%d, v%d, v%d' % (d, x, x + 1))

    def pairswap(self, p):
        A = self.A
        A('v_permlane16_swap_b32 v%d, v%d' % (p, p + 2))
        A('v_permlane16_swap_b32 v%d, v%d' % (p + 1, p + 3))

    def prologue(self):
        A = self.A
        A('s_cmp_ge_u32 s2, 256')
        A('s_cbranch_scc1 L_end')
        A('s_load_dwordx16 s[4:19], s[0:1], 0')
        A('s_load_dwordx4 s[20:23], s[0:1], 64')
        A('s_load_dwordx2 s[24:25], s[0:1], 80')
        if self.stamps:
            A('s_memrealtime s[100:101]')
        if self.pad:
            A('s_memrealtime s[2:3]') if False else None
            A('s_mov_b32 s3, s2')
            A('s_memrealtime s[100:101]')
        A('s_getpc_b64 s[68:69]')
        A('s_mov_b32 s70, CODE_BYTES')
        A('s_mov_b32 s71, 0x20000')
        A('v_and_b32 %s, 63, v0' % vL)
        A('v_lshrrev_b32 v50, 6, v0')
        A('s_lshr_b32 %s, s2, 3' % T0)
        A('s_and_b32 %s, %s, 15' % (T0, T0))
        A('s_lshl_b32 %s, %s, 11' % (T0, T0))
        A('v_lshlrev_b32 v51, 7, v0')
        A('v_cmp_gt_u32 vcc, 16, v0')
        A('v_readfirstlane_b32 %s, v50' % W)
        A('v_mov_b32 v52, %d' % BIG)
        A('v_cndmask_b32 v51, v52, v51, vcc')
        A('buffer_load_dword v254, v51, %s, %s offen' % (sCODE, T0))
        A('s_and_b32 %s, s2, 31' % G)
        A('s_lshr_b32 %s, s2, 5' % J)
        A('s_lshr_b32 %s, %s, 3' % (AQ, G))
        A('s_lshl_b32 %s, %s, 10' % (WL, W))
        A('s_mov_b32 %s, 0' % SPIN)
        A('v_lshrrev_b32 v54, 2, %s' % vL)
        A('v_lshrrev_b32 v55, 5, %s' % vL)
        A('v_mul_u32_u24 v55, 3, v55')
        A('v_and_b32 v56, 3, %s' % vL)
        A('v_xor_b32 v55, v55, v56')
        A('v_lshlrev_b32 v55, 4, v55')
        A('v_lshl_add_u32 v55, v54, 10, v55')
        A('s_lshl_b32 %s, %s, 14' % (T0, W))
        A('v_add_u32 v%d, %s, v55' % (vXg, T0))
        A('v_lshrrev_b32 v57, 5, %s' % vL)
        A('v_bfe_u32 v58, %s, 2, 2' % vL)
        A('v_lshl_add_u32 v57, v57, 2, v58')
        A('s_lshl_b32 %s, %s, 3' % (T0, W))
        A('v_add_u32 v59, %s, v57' % T0)
        A('s_and_b32 %s, %s, 1' % (T0, W))
        A('s_lshl_b32 %s, %s, 1' % (T0, T0))
        A('v_xor_b32 v60, %s, v56' % T0)
        A('v_bfe_u32 v61, %s, 4, 1' % vL)
        A('v_lshlrev_b32 v62, 6, v61')
        A('v_lshl_add_u32 v60, v60, 4, v62')
        A('s_movk_i32 %s, 3072' % T0)
        A('v_mad_u32_u24 v%d, v59, %s, v60' % (vWq, T0))
        for t in range(4):
            A('s_add_u32 %s, %s, %d' % (T0, AQ, t))
            A('s_and_b32 %s, %s, 3' % (T0, T0))
            A('s_mul_i32 %s, %s, %d' % (sQq[t], T0, 128 * 3072))
            A('s_lshl_b32 %s, %s, 8' % (sQx[t], T0))
            A('s_lshl_b32 %s, %s, 17' % (sQo[t], T0))
            A('s_mul_i32 %s, %s, %d' % (sQ1[t], T0, 128 * 2752))
            A('s_lshl_b32 %s, %s, 14' % (sQi[t], T0))
        A('s_lshl_b32 %s, %s, 7' % (T0, J))
        A('s_lshl_b32 %s, %s, 16' % (T1, G))
        for t in range(4):
            A('s_add_u32 %s, %s, %s' % (sQq[t], sQq[t], T0))
            A('s_add_u32 %s, %s, %s' % (sQx[t], sQx[t], T1))
            A('s_add_u32 %s, %s, %s' % (sQo[t], sQo[t], T0))
            A('s_add_u32 %s, %s, %s' % (sQi[t], sQi[t], T1))
        A.wait_lg()
        if self.stamps:
            A('v_writelane_b32 v%d, s100, 63' % VSTAMP)
        for srd, p, size in ((28, 4, 2097152), (32, 6, 1572864), (52, 24, STAMP_OFF + 0x100000 if self.stamps else WS_USE)):
            A('s_mov_b32 s%d, s%d' % (srd, p))
            A('s_mov_b32 s%d, s%d' % (srd + 1, p + 1))
            A('s_mov_b32 s%d, %d' % (srd + 2, size))
            A('s_mov_b32 s%d, 0x20000' % (srd + 3))
        self.stamp('args')
        A('v_lshlrev_b32 v63, 10, v0')
        A('v_cmp_gt_u32 vcc, 64, v0')
        A('s_add_u32 %s, %s, %s' % (T0, T0, T1))
        A('v_cndmask_b32 v63, v52, v63, vcc')
        A('buffer_load_dword v253, v63, %s, %s offen' % (sX, T0))
        self.KV = {}
        self.X = {}
        for s in range(11):
            self.KV[s] = (self.u_qkv(1, s, 2 * s), self.u_qkv(2, s, 2 * s + 1))
        for s in range(16):
            self.X[s] = self.u_x(s)
        for s in range(4):
            self.KV[s][0]()
            self.KV[s][1]()
        for srd, p, size in ((36, 8, 524288), (40, 12, 1409024), (44, 16, 1409024), (48, 20, 2097152),
                             (56, 14, 2752), (60, 18, 1024), (64, 22, 256)):
            A('s_mov_b32 s%d, s%d' % (srd, p))
            A('s_mov_b32 s%d, s%d' % (srd + 1, p + 1))
            A('s_mov_b32 s%d, %d' % (srd + 2, size))
            A('s_mov_b32 s%d, 0x20000' % (srd + 3))
        A('s_mul_i32 %s, %s, 11' % (TILE0, J))
        A('s_and_b32 %s, %s, 1' % (T0, J))
        A('s_add_u32 %s, %s, %s' % (TILE0, TILE0, T0))
        A('s_min_u32 %s, %s, 76' % (TILE0, TILE0))
        A('s_cmp_ge_u32 %s, 6' % J)
        A('s_cselect_b32 %s, 1, %s' % (T0, T0))
        A('s_cmp_eq_u32 %s, 0' % T0)
        A('s_cselect_b32 %s, 12, 10' % NT)
        A('v_lshrrev_b32 v64, 4, %s' % vL)
        A('v_lshlrev_b32 v65, 3, v64')
        A('s_add_u32 %s, %s, %s' % (T0, TILE0, W))
        A('s_lshl_b32 %s, %s, 5' % (T0, T0))
        for c in range(3):
            A('buffer_load_dwordx2 %s, v65, %s, %s offen offset:%d' % (vr(B1P + 2 * c, 2), sB1, T0, c * 128))
        A('v_and_b32 v66, 7, %s' % vL)
        A('v_lshlrev_b32 v66, 4, v66')
        A('s_lshl_b32 %s, %s, 7' % (T0, J))
        A('buffer_load_dwordx4 %s, v66, %s, %s offen' % (vr(B2P, 4), sB2, T0))
        A('s_lshl_b32 %s, %s, 8' % (SYB, G))
        A('s_add_u32 %s, %s, %d' % (SYB, SYB, SY_OFF))
        A('v_lshlrev_b32 v%d, 4, %s' % (vL16, vL))
        A('v_add_u32 v%d, %s, v%d' % (vLin, WL, vL16))
        for r in range(4):
            A('v_mov_b32 v%d, -1' % (68 + r))
            A('v_mov_b32 v%d, 0' % (72 + r))
        A('v_cmp_gt_u32 vcc, 128, v0')
        A('v_cndmask_b32 v76, v52, v%d, vcc' % vLin)
        A('v_cmp_gt_u32 vcc, 8, v0')
        A('v_cndmask_b32 v77, v52, v%d, vcc' % vLin)
        A('s_mul_i32 %s, %s, 18432' % (T0, G))
        A.fence()
        A('s_cmp_lg_u32 %s, 0' % J)
        A('s_cbranch_scc1 L_noinit')
        for i in range(5):
            A.raw('    buffer_store_dwordx4 v[68:71], v%d, %s, %s offen sc1' % (vLin if i < 4 else 76, sWS, T0))
            A.raw('    s_add_u32 %s, %s, 4096' % (T0, T0))
        A.raw('    buffer_store_dwordx4 v[72:75], v77, %s, %s offen sc1' % (sWS, SYB))
        A.label('L_noinit')
        for s in range(4):
            self.X[s]()
        for s in range(4, 8):
            self.KV[s][0]()
            self.KV[s][1]()
        for s in range(4, 8):
            self.X[s]()
        for s in range(8, 11):
            self.KV[s][0]()
            self.KV[s][1]()
        for s in range(8, 16):
            self.X[s]()
        self.stamp('issued')
        A('s_mov_b32 s4, %s' % f32(1e-6))
        A('s_mov_b32 s5, %s' % f32(1e-6))
        A('s_mov_b32 s6, %s' % f32(math.log2(math.e)))
        A('s_mov_b32 s7, %s' % f32(math.log2(math.e)))
        c0 = -2.0 * math.sqrt(2.0 / math.pi) * math.log2(math.e)
        A('s_mov_b32 s8, %s' % f32(c0 * 0.044715))
        A('s_mov_b32 s9, %s' % f32(c0))
        A('s_mov_b32 %s, 0xffff0000' % HI16)
        A('s_mov_b32 %s, 0' % FAST)
        A('s_lshl_b32 %s, %s, 2' % (HEAD, J))
        A('s_add_u32 %s, %s, %s' % (HEAD, HEAD, W))
        A('s_lshl_b32 %s, %s, 5' % (T0, TILE0))
        for t in range(4):
            A('s_add_u32 %s, %s, %s' % (sQ1[t], sQ1[t], T0))
        A('v_lshl_add_u32 v%d, v59, 10, v60' % vWo)
        A('s_movk_i32 %s, 2752' % T0)
        A('v_mad_u32_u24 v%d, v59, %s, v60' % (vW1, T0))
        A('s_cmp_eq_u32 %s, 10' % NT)
        A('s_cselect_b32 %s, %d, 0' % (T0, BIG))
        A('v_mul_lo_u32 v62, v61, %s' % T0)
        A('v_add_u32 v%d, v62, v%d' % (vW1m, vW1))
        A('v_lshlrev_b32 v62, 6, v61')
        A('v_lshl_add_u32 v62, v56, 4, v62')
        A('v_lshl_add_u32 v%d, v57, 10, v62' % vW2g)
        A('v_and_b32 v67, 15, %s' % vL)
        A('v_lshrrev_b32 v68, 3, v67')
        A('v_mul_u32_u24 v68, 3, v68')
        A('v_xor_b32 v68, v68, v64')
        A('v_lshlrev_b32 v68, 4, v68')
        A('v_lshl_add_u32 v68, v67, 6, v68')
        for t in range(4):
            A('s_xor_b32 %s, %s, %d' % (T0, W, t))
            A('s_lshl_b32 %s, %s, 10' % (T0, T0))
            A('v_add_u32 v%d, %s, v68' % (vA[t], T0))
            A('v_add_u32 v%d, %s, v%d' % (vH[t], T0, vL16))
        A('v_and_b32 v69, 1, v64')
        A('s_and_b32 %s, %s, 1' % (T0, W))
        A('v_xor_b32 v70, %s, v69' % T0)
        A('v_lshlrev_b32 v71, 5, v70')
        A('v_lshl_add_u32 v71, v64, 10, v71')
        A('v_lshl_add_u32 v71, v58, 6, v71')
        A('v_lshl_add_u32 v71, v56, 3, v71')
        A('s_lshr_b32 %s, %s, 1' % (T1, W))
        A('s_lshl_b32 %s, %s, 8' % (T1, T1))
        A('s_add_u32 %s, %s, %d' % (T1, T1, RING))
        A('v_add_u32 v%d, %s, v71' % (vTrA, T1))
        A('v_add_u32 v%d, 0x10000, v%d' % (vTrB, vTrA))
        A('v_lshrrev_b32 v72, 1, v64')
        A('v_xor_b32 v73, %s, v69' % W)
        A('v_lshlrev_b32 v73, 10, v73')
        A('v_lshl_add_u32 v73, v72, 8, v73')
        A('v_lshl_add_u32 v73, v67, 4, v73')
        A('s_lshl_b32 %s, %s, 9' % (T0, T0))
        A('s_lshr_b32 %s, %s, 1' % (T1, HEAD))
        A('s_lshl_b32 %s, %s, 12' % (T1, T1))
        A('s_add_u32 %s, %s, %s' % (T0, T0, T1))
        A('s_lshl_b32 %s, %s, 16' % (T1, G))
        A('s_add_u32 %s, %s, %s' % (T0, T0, T1))
        A('v_add_u32 v%d, %s, v73' % (vOst0, T0))
        A('v_xor_b32 v%d, 0x800, v%d' % (vOst1, vOst0))
        A('v_lshlrev_b32 v74, 9, v72')
        A('v_lshl_add_u32 v74, v70, 8, v74')
        A('v_lshl_add_u32 v%d, v67, 4, v74' % vHHst)
        A('v_lshrrev_b32 v74, 5, %s' % vL)
        A('v_lshlrev_b32 v74, 10, v74')
        A('v_lshl_add_u32 v74, v61, 5, v74')
        A('v_lshl_add_u32 v74, v58, 6, v74')
        A('v_lshl_add_u32 v%d, v56, 3, v74' % vT32)
        for r in range(4):
            A('v_mov_b32 v%d, 0x3f803f80' % (ONES + r))
        A('v_lshlrev_b32 v75, 3, v69')
        A('v_sub_u32 v75, v67, v75')
        A('v_and_b32 v76, 1, v75')
        A('v_lshlrev_b32 v76, 4, v76')
        A('s_movk_i32 %s, 0x3f80' % T0)
        A('v_lshlrev_b32_e64 v76, v76, %s' % T0)
        A('v_ashrrev_i32 v75, 1, v75')
        for r in range(4):
            A('v_cmp_eq_u32 vcc, %d, v75' % r)
            A('v_cndmask_b32 v%d, 0, v76, vcc' % (SEL + r))

    def phaseA(self):
        A = self.A
        accK, accV, csK, csV, SUM, GRAM = 52, 68, 84, 88, 92, 96
        fa = [100, 124]
        kslot = {s: 2 * s for s in range(11)}
        kslot.update({11: 0, 12: 2, 13: 4, 14: 6, 15: 8})
        for s in range(11, 16):
            self.KV[s] = (self.u_qkv(1, s, kslot[s]), self.u_qkv(2, s, kslot[s] + 1))
        qslot = [10, 11, 12, 13, 14, 15, 16, 17, 18, 19, 20, 21, 0, 1, 2, 3]
        Q = [self.u_qkv(0, s, qslot[s]) for s in range(16)]
        self.oslot = list(range(4, 20))
        self.O = [self.u_wo(s, self.oslot[s]) for s in range(16)]
        self.w1slot = {}
        self.W1 = {}
        for i, sl in enumerate([20, 21, 0, 1, 2, 3]):
            self.w1slot[(0, i)] = sl
            self.W1[(0, i)] = self.u_w1(0, i, sl)
        refill = {4: [u for s in range(11, 15) for u in self.KV[s]],
                  8: list(self.KV[15]) + Q[0:6],
                  12: Q[6:14]}

        def reads(s):
            b = fa[s & 1]
            return (self.tr16(('v', b + 16), kslot[s]) + self.areads(vA, b, s)[:1] + self.tr16(('v', b + 20), kslot[s] + 1)
                    + self.areads(vA, b, s)[1:])

        def mf(s):
            b = fa[s & 1]
            c = (lambda r: '0') if s == 0 else (lambda r: vr(r, 4))
            M = 'v_mfma_f32_16x16x32_bf16 %s, %s, %s, %s'
            wk, wv, one = vr(b + 16, 4), vr(b + 20, 4), vr(ONES, 4)
            out = [M % (vr(csK, 4), one, wk, c(csK)), M % (vr(accK, 4), vr(b, 4), wk, c(accK)),
                   M % (vr(SUM, 4), one, vr(b, 4), c(SUM)), M % (vr(GRAM, 4), vr(b, 4), vr(b, 4), c(GRAM)),
                   M % (vr(csV, 4), one, wv, c(csV)), M % (vr(accV, 4), vr(b, 4), wv, c(accV))]
            for t in range(1, 4):
                out.append(M % (vr(accK + 4 * t, 4), vr(b + 4 * t, 4), wk, c(accK + 4 * t)))
                out.append(M % (vr(accV + 4 * t, 4), vr(b + 4 * t, 4), wv, c(accV + 4 * t)))
            return out

        A.wait_vm(self.X[3].seq)
        self.barrier()
        A('s_or_b32 %s, %s, %s' % (T0, J, W))
        A('s_cmp_lg_u32 %s, 0' % T0)
        A('s_cbranch_scc1 L_noarr')
        A('v_mov_b32 v50, 1')
        A('s_mov_b64 %s, exec' % EXS)
        A('s_mov_b64 exec, 1')
        A.raw('    buffer_atomic_add v50, off, %s, 0' % sDBG)
        A('s_mov_b64 exec, %s' % EXS)
        A.label('L_noarr')
        self.stamp('A0')
        for r in reads(0):
            A(r)
        for s in range(16):
            fill = []
            if s + 1 < 16:
                if (s + 1) % 4 == 0:
                    A.wait_lg()
                    last = s + 4
                    A.wait_vm(max(self.X[last].seq, self.KV[last][1].seq or 0) if self.KV[last][1].seq else self.X[last].seq)
                    self.barrier()
                    self.stamp('A%d' % (s + 1))
                    fill += reads(s + 1) + refill[s + 1]
                else:
                    fill += reads(s + 1)
            self.inter(mf(s), fill)
        self.stamp('Akv')
        A('buffer_load_dword v200, off, %s, 0 sc1' % sDBG)
        self.stats(SUM, GRAM, 100, False)
        A.wait_lg()
        A.wait_vm(Q[7].seq)
        self.barrier()
        for u in Q[14:16] + self.O[0:6]:
            u()
        a4, b4, u0 = 148, 164, 112
        A('s_lshl_b32 %s, %s, 6' % (T0, W))
        A('v_lshrrev_b32 v100, 4, %s' % vL)
        A('v_lshlrev_b32 v100, 4, v100')
        for t in range(4):
            A('s_xor_b32 %s, %s, %d' % (T0, W, t))
            A('s_lshl_b32 %s, %s, 6' % (T0, T0))
            A('s_add_u32 %s, %s, %d' % (T0, T0, MISC))
            A('v_add_u32 v%d, %s, v100' % (101 + t, T0))
            A('ds_read_b128 %s, v%d' % (vr(a4 + 4 * t, 4), 101 + t))
            A('ds_read_b128 %s, v%d offset:256' % (vr(b4 + 4 * t, 4), 101 + t))
        AB = 188
        self.read_ab_T(AB, 105)
        A('s_lshr_b32 %s, %s, 1' % (T0, HEAD))
        A('s_lshl_b32 %s, %s, 2' % (T1, AQ))
        A('s_sub_u32 %s, %s, %s' % (T0, T0, T1))
        A('s_and_b32 %s, %s, 15' % (T0, T0))
        A('s_lshl_b32 %s, %s, 12' % (T0, T0))
        A('v_lshrrev_b32 v110, 5, %s' % vL)
        A('s_and_b32 %s, %s, 1' % (T1, W))
        A('s_lshl_b32 %s, %s, 1' % (T1, T1))
        A('v_add_u32 v110, %s, v110' % T1)
        A('v_bfe_u32 v111, %s, 3, 1' % vL)
        A('v_mul_u32_u24 v111, 3, v111')
        A('v_xor_b32 v110, v110, v111')
        A('v_lshlrev_b32 v110, 4, v110')
        A('v_and_b32 v111, 15, %s' % vL)
        A('v_lshl_add_u32 v110, v111, 6, v110')
        A('v_bfe_u32 v111, %s, 4, 1' % vL)
        A('v_lshl_add_u32 v110, v111, 3, v110')
        for t in range(4):
            A('s_xor_b32 %s, %s, %d' % (T1, W, t))
            A('s_lshl_b32 %s, %s, 10' % (T1, T1))
            A('s_add_u32 %s, %s, %s' % (T1, T1, T0))
            A('v_add_u32 v%d, %s, v110' % (196 + t, T1))
            A('ds_read_b64 %s, v%d' % (vr(XRES + 2 * t, 2), 196 + t))
        PK, VV = 132, 140
        for t in range(4):
            for h in range(2):
                i = 4 * t + 2 * h
                A('v_pk_fma_f32 %s, %s, %s, %s' % (vr(u0 + i, 2), vr(b4 + i, 2), vr(csK, 2), C_E6))
                A('v_pk_fma_f32 %s, %s, %s, %s' % (vr(accK + i, 2), vr(a4 + i, 2), vr(accK + i, 2), vr(u0 + i, 2)))
        self.phi_pairs([(PK + i, accK + 2 * i, u0 + 2 * i) for i in range(8)])
        for t in range(4):
            for h in range(2):
                i = 4 * t + 2 * h
                A('v_pk_mul_f32 %s, %s, %s' % (vr(u0 + i, 2), vr(b4 + i, 2), vr(csV, 2)))
                A('v_pk_fma_f32 %s, %s, %s, %s' % (vr(accV + i, 2), vr(a4 + i, 2), vr(accV + i, 2), vr(u0 + i, 2)))
                A('v_cvt_pk_bf16_f32 v%d, v%d, v%d' % (VV + i // 2, accV + i, accV + i + 1))
        KVP, ZP = 112, 116
        M = 'v_mfma_f32_16x16x32_bf16 %s, %s, %s, %s'
        A(M % (vr(KVP, 4), vr(PK, 4), vr(VV, 4), '0'))
        A(M % (vr(ZP, 4), vr(PK, 4), vr(ONES, 4), '0'))
        A(M % (vr(KVP, 4), vr(PK + 4, 4), vr(VV + 4, 4), vr(KVP, 4)))
        A(M % (vr(ZP, 4), vr(PK + 4, 4), vr(ONES, 4), vr(ZP, 4)))
        A('v_mov_b32 v124, %d' % BIG)
        A('v_lshrrev_b32 v125, 5, %s' % vL)
        A('v_and_b32 v126, 15, %s' % vL)
        A('v_lshlrev_b32 v125, 8, v125')
        A('v_lshl_add_u32 v125, v126, 4, v125')
        A('v_and_b32 v127, 16, %s' % vL)
        A('v_cmp_eq_u32 vcc, 0, v127')
        A('v_lshrrev_b32 v127, 4, %s' % vL)
        A('v_lshlrev_b32 v127, 9, v127')
        A('v_cndmask_b32 v125, v124, v125, vcc')
        A('v_cmp_eq_u32 vcc, 0, v126')
        A('s_lshl_b32 %s, %s, 14' % (T2, HEAD))
        A('s_lshl_b32 %s, %s, 9' % (T0, G))
        A('v_cndmask_b32 v127, v124, v127, vcc')
        A('s_add_u32 %s, %s, %s' % (T4, T2, T0))
        A('s_lshl_b32 %s, %s, 11' % (T3, HEAD))
        A('s_add_u32 %s, %s, %d' % (T3, T3, Z_OFF))
        A('s_lshl_b32 %s, %s, 4' % (T0, G))
        A('s_add_u32 %s, %s, %s' % (T5, T3, T0))
        lab = self.newlab('c0')
        A('v_cmp_gt_u32 vcc, 32, v200')
        A('s_cbranch_vccz %s_x' % lab)
        A.label(lab)
        A.raw('    buffer_load_dword v200, off, %s, 0 sc1' % sDBG)
        A.raw('    s_waitcnt vmcnt(0)')
        A('v_cmp_gt_u32 vcc, 32, v200')
        self.spin_tail(lab)
        A('v_cvt_pk_bf16_f32 v120, v%d, v%d' % (KVP, KVP + 1))
        A('v_cvt_pk_bf16_f32 v121, v%d, v%d' % (KVP + 2, KVP + 3))
        for r in range(4):
            A('v_min_u32 v%d, -2, v%d' % (ZP + r, ZP + r))
        A('v_min_u32 v120, -2, v120')
        A('v_min_u32 v121, -2, v121')
        A('v_mov_b32 v122, v120')
        A('v_mov_b32 v123, v121')
        self.pairswap(120)
        A('buffer_store_dwordx4 v[120:123], v125, %s, %s offen sc1' % (sWS, T4))
        A('buffer_store_dwordx4 %s, v127, %s, %s offen sc1' % (vr(ZP, 4), sWS, T5))
        A('s_getreg_b32 %s, hwreg(HW_REG_XCC_ID)' % T0)
        A('s_and_b32 %s, %s, 15' % (T0, T0))
        A('s_add_u32 %s, %s, 1' % (FAST, T0))
        A('v_mov_b32 v128, %s' % FAST)
        A('v_cmp_eq_u32 vcc, 0, v0')
        A('s_lshl_b32 %s, %s, 2' % (T0, J))
        A('v_mov_b32 v129, %s' % T0)
        A('v_cndmask_b32 v129, v124, v129, vcc')
        A('buffer_store_dword v128, v129, %s, %s offen sc1' % (sWS, SYB))
        self.stamp('pubkv')
        accQ, csQ = 52, 84
        fq = [100, 124]

        def qreads(s):
            b = fq[s & 1]
            return self.tr16(('v', b + 16), qslot[s]) + self.areads(vA, b, s)

        def qmf(s):
            b = fq[s & 1]
            c = (lambda r: '0') if s == 0 else (lambda r: vr(r, 4))
            wq = vr(b + 16, 4)
            return [M % (vr(csQ, 4), wq, vr(ONES, 4), c(csQ))] + \
                   [M % (vr(accQ + 4 * t, 4), wq, vr(b + 4 * t, 4), c(accQ + 4 * t)) for t in range(4)]
        for r in qreads(0):
            A(r)
        for s in range(16):
            fill = []
            if s + 1 < 16:
                if s + 1 == 8:
                    A.wait_lg()
                    A.wait_vm(Q[15].seq)
                    self.barrier()
                    fill += qreads(s + 1) + self.O[6:14]
                else:
                    fill += qreads(s + 1)
            self.inter(qmf(s), fill)
        A.wait_lg()
        self.barrier()
        for u in self.O[14:16] + [self.W1[(0, i)] for i in range(6)]:
            u()
        self.stamp('Aq')
        PQ = 180
        for t in range(4):
            for h in range(2):
                i = 4 * t + 2 * h
                ab = vr(AB + 2 * t, 2)
                A('v_pk_fma_f32 %s, %s, %s, %s op_sel:[0,1,0] op_sel_hi:[1,1,1]' % (vr(u0 + i, 2), vr(csQ + 2 * h, 2), ab, C_E6))
                A('v_pk_fma_f32 %s, %s, %s, %s op_sel:[0,0,0] op_sel_hi:[1,0,1]' % (vr(accQ + i, 2), vr(accQ + i, 2), ab, vr(u0 + i, 2)))
        self.phi_pairs([(PQ + i, accQ + 2 * i, u0 + 2 * i) for i in range(8)])
        KL, ZL, IDS = 100, 164, 172
        A('v_and_b32 v173, 15, %s' % vL)
        A('v_lshrrev_b32 v174, 4, %s' % vL)
        A('v_lshlrev_b32 v174, 9, v174')
        A('v_lshl_add_u32 v173, v173, 4, v174')
        A('v_and_b32 v174, 7, %s' % vL)
        A('v_lshlrev_b32 v174, 2, v174')
        lab = self.newlab('kv')
        A.wait_lg()
        A.fence()
        self.stamp('phiq')
        A.label(lab)
        A('buffer_load_dwordx4 %s, v173, %s, %s offen sc1' % (vr(ZL, 4), sWS, T3))
        A('buffer_load_dwordx4 %s, v173, %s, %s offen offset:256 sc1' % (vr(ZL + 4, 4), sWS, T3))
        A('buffer_load_dword v%d, v174, %s, %s offen sc1' % (IDS, sWS, SYB))
        for i in range(16):
            if i % 4 == 0:
                A('s_add_u32 %s, %s, %d' % (T0, T2, KV_OFF + i * 1024))
            A('buffer_load_dwordx4 %s, v%d, %s, %s offen offset:%d sc1' % (vr(KL + 4 * i, 4), vL16, sWS, T0, (i % 4) * 1024))
        A('v_max3_u32 v175, v%d, v%d, v%d' % (ZL, ZL + 1, ZL + 2))
        rest = list(range(ZL + 3, ZL + 8)) + list(range(KL, KL + 64))
        A('v_add_u32 v176, -1, v%d' % IDS)
        rest = [176] + rest
        for i in range(0, len(rest), 2):
            A('v_max3_u32 v175, v175, v%d, v%d' % (rest[i], rest[i + 1]))
        A.force_wait('vmcnt(0)')
        A('v_cmp_eq_u32 vcc, -1, v175')
        self.spin_tail(lab)
        self.stamp('gath')
        KS = 52
        for i in range(16):
            A(M % (vr(KS, 4), vr(SEL, 4), vr(KL + 4 * i, 4), '0' if i == 0 else vr(KS, 4)))
            if i < 4:
                A('v_add_f32 v%d, v%d, v%d' % (ZL + i, ZL + i, ZL + 4 + i))
            elif i >= 5 and i % 2 == 1 and i < 13:
                for r in range(4):
                    A('v_add_f32_dpp v%d, v%d, v%d row_ror:%d row_mask:0xf bank_mask:0xf' % (
                        ZL + r, ZL + r, ZL + r, 1 << ((i - 5) // 2)))
        A('v_cmp_ne_u32 vcc, %s, v%d' % (FAST, IDS))
        A('v_cvt_pk_bf16_f32 v58, v%d, v%d' % (ZL, ZL + 1))
        A('v_cvt_pk_bf16_f32 v59, v%d, v%d' % (ZL + 2, ZL + 3))
        A('s_cmp_eq_u64 vcc, 0')
        A('s_cselect_b32 %s, 1, 0' % FAST)
        A('v_cvt_pk_bf16_f32 v56, v%d, v%d' % (KS, KS + 1))
        A('v_cvt_pk_bf16_f32 v57, v%d, v%d' % (KS + 2, KS + 3))
        NUM, DEN = 60, 76
        M16 = 'v_mfma_f32_16x16x16_bf16 %s, %s, %s, 0'
        for t in range(4):
            A(M16 % (vr(DEN + 4 * t, 4), 'v[58:59]', vr(PQ + 2 * t, 2)))
        for t in range(4):
            A(M16 % (vr(NUM + 4 * t, 4), 'v[56:57]', vr(PQ + 2 * t, 2)))
        for t in range(4):
            A('v_add_f32 v%d, s4, v%d' % (DEN + 4 * t, DEN + 4 * t))
        for t in range(4):
            A('v_rcp_f32 v%d, v%d' % (DEN + 4 * t, DEN + 4 * t))
        OP = 92
        for t in range(4):
            for h in range(2):
                i = NUM + 4 * t + 2 * h
                A('v_pk_mul_f32 %s, %s, %s op_sel_hi:[1,0]' % (vr(i, 2), vr(i, 2), vr(DEN + 4 * t, 2)))
        for t in range(4):
            for h in range(2):
                i = NUM + 4 * t + 2 * h
                A('v_cvt_pk_bf16_f32 v%d, v%d, v%d' % (OP + 2 * t + h, i, i + 1))
        self.pairswap(OP)
        self.pairswap(OP + 4)
        A('s_mov_b32 %s, %d' % (T0, O_OFF))
        self.stores(['buffer_store_dwordx4 %s, v%d, %s, %s offen' % (vr(OP, 4), vOst0, sWS, T0),
                     'buffer_store_dwordx4 %s, v%d, %s, %s offen' % (vr(OP + 4, 4), vOst1, sWS, T0)])
        A.wait_all()
        self.barrier()
        self.set_flag(32)
        self.stamp('pubo')
        for s in range(16):
            for r in self.tr16(('a', 192 + 4 * s), self.oslot[s]):
                A(r)
        for i in range(6):
            for r in self.tr16(('a', 4 * i), self.w1slot[(0, i)]):
                A(r)
        A.wait_lg()
        self.barrier()

    def img_pass(self, units, mf, hooks=None, staged=True):
        A = self.A
        fb = [100, 116]
        hooks = hooks or {}
        if staged:
            A.wait_vm(units[3].seq)
            self.barrier()
        for r in self.areads(vH, fb[0], 0):
            A(r)
        for s in range(16):
            fill = []
            if s + 1 < 16:
                if staged and (s + 1) % 4 == 0:
                    A.wait_lg()
                    A.wait_vm(units[s + 4].seq)
                    self.barrier()
                fill += self.areads(vH, fb[(s + 1) & 1], s + 1)
            pre, extra = hooks.get(s, (None, []))
            if pre:
                pre()
            self.inter(mf(s, fb[s & 1]), fill + list(extra))

    def phaseB(self):
        A = self.A
        M = 'v_mfma_f32_16x16x32_bf16 %s, %s, %s, %s'
        self.wait_flags(32)
        self.stamp('gotO')
        U = [self.u_img(O_OFF, s) for s in range(16)]
        for u in U:
            u()
        todo = [(0, i) for i in range(6, 16)] + [(1, i) for i in range(12)]
        for sl, k in enumerate(todo):
            self.w1slot[k] = sl
            self.W1[k] = self.u_w1(k[0], k[1], sl)
            self.W1[k]()
        acc = 52

        def mf(s, b):
            return [M % (vr(acc + 4 * t, 4), ar(192 + 4 * s, 4), vr(b + 4 * t, 4), '0' if s == 0 else vr(acc + 4 * t, 4))
                    for t in range(4)]
        self.img_pass(U, mf)
        self.stamp('Bgemm')
        x = 68
        for i in range(8):
            A('v_lshlrev_b32 v%d, 16, v%d' % (x + 2 * i, XRES + i))
            A('v_and_b32 v%d, %s, v%d' % (x + 2 * i + 1, HI16, XRES + i))
        HP = 92
        for i in range(8):
            A('v_pk_add_f32 %s, %s, %s' % (vr(acc + 2 * i, 2), vr(acc + 2 * i, 2), vr(x + 2 * i, 2)))
        for i in range(8):
            A('v_cvt_pk_bf16_f32 v%d, v%d, v%d' % (HP + i, acc + 2 * i, acc + 2 * i + 1))
        self.pairswap(HP)
        self.pairswap(HP + 4)
        A('s_mov_b32 %s, %d' % (T0, H_OFF))
        self.stores(['buffer_store_dwordx4 %s, v%d, %s, %s offen' % (vr(HP, 4), vOst0, sWS, T0),
                     'buffer_store_dwordx4 %s, v%d, %s, %s offen' % (vr(HP + 4, 4), vOst1, sWS, T0)])
        A.wait_all()
        self.barrier()
        self.set_flag(64)
        self.stamp('pubh')
        for k in todo:
            for r in self.tr16(('a', (k[0] * 16 + k[1]) * 4), self.w1slot[k]):
                A(r)
        A.wait_lg()
        self.barrier()

    def w2_unit(self, p):
        def go():
            A = self.A
            if p < 11:
                base, off = T4, p * 2048
            elif p < 19:
                base, off = T5, (p - 11) * 2048
            else:
                base, off = T4, (p - 19) * 2048
            A('s_add_u32 m0, %s, %d' % (base, off))
            A('s_nop 0')
            A('buffer_load_dwordx4 v%d, %s, %s offen lds' % (vW2g, sW2, T2))
            A('s_add_u32 m0, %s, %d' % (base, off + 1024))
            A('s_add_u32 %s, %s, 8192' % (T0, T2))
            go.seq = A('buffer_load_dwordx4 v%d, %s, %s offen lds' % (vW2g, sW2, T0))
            A('s_add_u32 %s, %s, 16384' % (T2, T2))
            A('s_cmp_eq_u32 %s, %s' % (T2, T3))
            A('s_cselect_b32 %s, %s, %s' % (T2, sQq[0], T2))
        go.seq = None
        return go

    def w2_tr(self, p):
        if p < 11:
            r, off = self.vTring, p * 2048
        elif p < 19:
            r, off = self.vTr0, (p - 11) * 2048
        else:
            r, off = self.vTring, (p - 19) * 2048
        out = []
        for ct in range(2):
            for kq in range(2):
                d = p * 8 + ct * 4 + kq * 2
                out.append('ds_read_b64_tr_b16 a[%d:%d], v%d offset:%d' % (d, d + 1, r, off + kq * 512 + ct * 256))
        return out

    def phaseC(self):
        A = self.A
        M = 'v_mfma_f32_16x16x32_bf16 %s, %s, %s, %s'
        self.wait_flags(64)
        self.stamp('gotH')
        U = [self.u_img(H_OFF, s) for s in range(16)]
        for u in U:
            u()
        todo = [(1, i) for i in range(12, 16)] + [(2, i) for i in range(16)]
        for sl, k in enumerate(todo):
            self.w1slot[k] = sl
            self.W1[k] = self.u_w1(k[0], k[1], sl)
            self.W1[k]()
        acc = [52, 68, 84]
        cs = [132, 136, 140]
        SUM, GRAM = 144, 148

        def mf1(s, b):
            c = (lambda r: '0') if s == 0 else (lambda r: vr(r, 4))
            w = ar(4 * s, 4)
            return [M % (vr(cs[0], 4), w, vr(ONES, 4), c(cs[0])), M % (vr(acc[0], 4), w, vr(b, 4), c(acc[0])),
                    M % (vr(SUM, 4), vr(ONES, 4), vr(b, 4), c(SUM)), M % (vr(GRAM, 4), vr(b, 4), vr(b, 4), c(GRAM))] + \
                   [M % (vr(acc[0] + 4 * t, 4), w, vr(b + 4 * t, 4), c(acc[0] + 4 * t)) for t in range(1, 4)]
        self.img_pass(U, mf1)
        self.stamp('C1')
        self.stats(SUM, GRAM, 152, True)
        A('s_mul_i32 %s, %s, 11' % (T0, AQ))
        A('s_add_u32 %s, %s, 1' % (T0, T0))
        A('s_lshr_b32 %s, %s, 1' % (T0, T0))
        A('s_mul_i32 %s, %s, 22' % (T1, W))
        A('s_add_u32 %s, %s, %s' % (T0, T0, T1))
        A('s_lshl_b32 %s, %s, 7' % (T3, J))
        A('s_lshl_b32 %s, %s, 14' % (T2, T0))
        A('s_add_u32 %s, %s, %s' % (T2, T2, T3))
        A('s_lshl_b32 %s, %s, 14' % (sQq[0], T1))
        A('s_add_u32 %s, %s, %s' % (sQq[0], sQq[0], T3))
        A('s_add_u32 %s, %s, %d' % (T3, sQq[0], 22 * 16384))
        A('s_mul_i32 %s, %s, %d' % (sQx[0], G, HH_G))
        A('s_add_u32 %s, %s, %d' % (sQx[0], sQx[0], HH_OFF))
        A('s_lshl_b32 %s, %s, 10' % (sQx[1], T0))
        A('s_add_u32 %s, %s, %s' % (sQx[1], sQx[1], sQx[0]))
        A('s_lshl_b32 %s, %s, 10' % (sQx[2], T1))
        A('s_add_u32 %s, %s, %s' % (sQx[2], sQx[2], sQx[0]))
        A('s_add_u32 %s, %s, %d' % (sQx[3], sQx[2], 22 * 1024))
        A('s_mul_i32 %s, %s, 22528' % (T4, W))
        A('s_add_u32 %s, %s, %d' % (T4, T4, RING))
        A('s_lshl_b32 %s, %s, 14' % (T5, W))
        self.vTring, self.vTr0 = vXg, vWq
        A('v_add_u32 v%d, %s, v%d' % (self.vTring, T4, vT32))
        A('v_add_u32 v%d, %s, v%d' % (self.vTr0, T5, vT32))
        A.wait_lg()
        A.wait_vm(self.W1[todo[-1]].seq)
        self.barrier()
        AB = 164
        self.read_ab_T(AB, 152)
        W2 = [self.w2_unit(p) for p in range(22)]
        self.W2 = W2
        trs = {k: self.tr16(('a', (k[0] * 16 + k[1]) * 4), self.w1slot[k]) for k in todo}
        for r in trs[(2, 0)]:
            A(r)
        order = [(2, i) for i in range(1, 16)] + [(1, i) for i in range(12, 16)]
        allr = [r for k in order for r in trs[k]]

        def c2():
            A.wait_lg()
            self.barrier()
        hooks = {0: (None, allr[0:14]), 1: (None, allr[14:26]), 2: (None, allr[26:38]),
                 4: (c2, W2[0:2]), 5: (None, W2[2:4]), 6: (None, W2[4:6]), 7: (None, W2[6:8]), 8: (None, W2[8:10]),
                 9: (None, W2[10:11])}

        def mf2(s, b):
            c = (lambda r: '0') if s == 0 else (lambda r: vr(r, 4))
            out = []
            for k in (1, 2):
                w = ar((k * 16 + s) * 4, 4)
                out.append(M % (vr(cs[k], 4), w, vr(ONES, 4), c(cs[k])))
                out += [M % (vr(acc[k] + 4 * t, 4), w, vr(b + 4 * t, 4), c(acc[k] + 4 * t)) for t in range(4)]
            return out
        self.img_pass(U, mf2, hooks, staged=False)
        self.stamp('C2')
        HRES = XRES
        A('s_lshl_b32 %s, %s, 1' % (T0, J))
        A('s_lshl_b32 %s, %s, 2' % (T1, AQ))
        A('s_sub_u32 %s, %s, %s' % (T0, T0, T1))
        A('s_and_b32 %s, %s, 15' % (T0, T0))
        A('s_lshl_b32 %s, %s, 12' % (T0, T0))
        A('s_lshr_b32 %s, %s, 1' % (T1, W))
        A('s_lshl_b32 %s, %s, 10' % (T1, T1))
        A('s_add_u32 %s, %s, %s' % (T0, T0, T1))
        A('s_and_b32 %s, %s, 1' % (T1, W))
        A('s_lshl_b32 %s, %s, 7' % (T1, T1))
        A('s_add_u32 %s, %s, %s' % (T0, T0, T1))
        A('v_bfe_u32 v100, %s, 2, 1' % vL)
        A('v_lshlrev_b32 v100, 12, v100')
        A('v_and_b32 v101, 3, %s' % vL)
        A('v_lshl_add_u32 v100, v101, 8, v100')
        A('v_lshrrev_b32 v101, 3, %s' % vL)
        A('v_lshl_add_u32 v100, v101, 4, v100')
        A('v_add_u32 v100, %s, v100' % T0)
        A('ds_read_b128 %s, v100' % vr(HRES, 4))
        A('ds_read_b128 %s, v100 offset:2048' % vr(HRES + 4, 4))
        A.wait_lg()
        self.barrier()
        for p in range(11, 19):
            W2[p]()
        A.wait_vm(W2[10].seq)
        for p in range(11):
            for r in self.w2_tr(p):
                A(r)
        B1F = 100
        for c in range(3):
            for h in range(2):
                A('v_lshlrev_b32 v%d, 16, v%d' % (B1F + 4 * c + 2 * h, B1P + 2 * c + h))
                A('v_and_b32 v%d, %s, v%d' % (B1F + 4 * c + 2 * h + 1, HI16, B1P + 2 * c + h))
        A.wait_lg()
        for p in range(19, 22):
            W2[p]()
        self.stamp('w2a')
        u, e = 112, 172
        HP = 188
        for c in range(3):
            prs = [(t, h) for t in range(4) for h in range(2)]
            xs = [acc[c] + 4 * t + 2 * h for t, h in prs]
            for i, (t, h) in enumerate(prs):
                ab = vr(AB + 2 * t, 2)
                A('v_pk_fma_f32 %s, %s, %s, %s op_sel:[0,1,0] op_sel_hi:[1,1,1]' % (
                    vr(u + 2 * i, 2), vr(cs[c] + 2 * h, 2), ab, vr(B1F + 4 * c + 2 * h, 2)))
            for i, (t, h) in enumerate(prs):
                ab = vr(AB + 2 * t, 2)
                A('v_pk_fma_f32 %s, %s, %s, %s op_sel:[0,0,0] op_sel_hi:[1,0,1]' % (
                    vr(xs[i], 2), vr(xs[i], 2), ab, vr(u + 2 * i, 2)))
            for i in range(8):
                A('v_pk_mul_f32 %s, %s, %s' % (vr(e + 2 * i, 2), vr(xs[i], 2), vr(xs[i], 2)))
            for i in range(8):
                A('v_pk_fma_f32 %s, %s, %s, %s op_sel:[0,0,1] op_sel_hi:[1,0,1]' % (vr(e + 2 * i, 2), vr(e + 2 * i, 2), C_GELU, C_GELU))
            for i in range(8):
                A('v_pk_mul_f32 %s, %s, %s' % (vr(e + 2 * i, 2), vr(e + 2 * i, 2), vr(xs[i], 2)))
            for i in range(16):
                A('v_exp_f32 v%d, v%d' % (e + i, e + i))
            for i in range(8):
                A('v_pk_add_f32 %s, %s, 1.0 op_sel_hi:[1,0]' % (vr(e + 2 * i, 2), vr(e + 2 * i, 2)))
            for i in range(16):
                A('v_rcp_f32 v%d, v%d' % (e + i, e + i))
            for i in range(8):
                A('v_pk_mul_f32 %s, %s, %s' % (vr(xs[i], 2), vr(xs[i], 2), vr(e + 2 * i, 2)))
            hp = HP + 8 * c
            for i in range(8):
                A('v_cvt_pk_bf16_f32 v%d, v%d, v%d' % (hp + i, xs[i], xs[i] + 1))
            self.pairswap(hp)
            self.pairswap(hp + 4)
            A('s_add_u32 %s, %s, %d' % (T0, W, 4 * c))
            A('s_cmp_lt_u32 %s, %s' % (T0, NT))
            A('s_cselect_b32 %s, %s, %d' % (T1, sQx[0], BIG))
            A('s_add_u32 %s, %s, %s' % (T0, T0, TILE0))
            A('s_lshl_b32 %s, %s, 10' % (T0, T0))
            A('s_add_u32 %s, %s, %s' % (T0, T0, T1))
            A('s_lshr_b32 %s, %s, 1' % (T1, W))
            A('s_mul_i32 %s, %s, %d' % (T1, T1, 86 * 1024))
            A('s_add_u32 %s, %s, %s' % (sQo[0], T0, T1))
            A('s_sub_u32 %s, %d, %s' % (T1, 86 * 1024, T1))
            A('s_add_u32 %s, %s, %s' % (sQo[1], T0, T1))
            self.stores(['buffer_store_dwordx4 %s, v%d, %s, %s offen' % (vr(hp, 4), vHHst, sWS, sQo[0]),
                         'buffer_store_dwordx4 %s, v%d, %s, %s offen' % (vr(hp + 4, 4), vHHst, sWS, sQo[1])])
        self.stamp('gelu')
        A.wait_all()
        self.barrier()
        self.set_flag(96)
        self.stamp('pubhh')
        for p in range(11, 22):
            for r in self.w2_tr(p):
                A(r)

    def phaseD(self):
        A = self.A
        M = 'v_mfma_f32_32x32x16_bf16 %s, %s, %s, %s'
        HRES = XRES
        wa = [52, 53, 54, 55]
        ra = [56, 57, 58, 59]
        A('v_and_b32 v60, 31, %s' % vL)
        A('v_lshrrev_b32 v61, 5, %s' % vL)
        A('v_and_b32 v62, 7, %s' % vL)
        A('s_add_u32 %s, %s, 6144' % (T0, T4))
        for b in range(4):
            A('v_add_u32 v63, %d, v61' % (2 * b))
            A('v_xor_b32 v63, v63, v62')
            A('v_lshlrev_b32 v63, 4, v63')
            A('v_lshl_add_u32 v63, v60, 8, v63')
            A('v_add_u32 v%d, %s, v63' % (wa[b], T0))
        A('v_lshrrev_b32 v61, 3, %s' % vL)
        A('v_lshlrev_b32 v63, 1, v62')
        A('v_xor_b32 v63, v63, v61')
        A('v_lshlrev_b32 v63, 4, v63')
        A('v_lshl_add_u32 v63, v61, 8, v63')
        A('s_lshl_b32 %s, %s, 11' % (T0, W))
        A('s_add_u32 %s, %s, %d' % (T0, T0, RING + 6144))
        A('v_add_u32 v%d, %s, v63' % (ra[0], T0))
        A('v_xor_b32 v%d, 16, v%d' % (ra[1], ra[0]))
        A('v_add_u32 v%d, %d, v%d' % (ra[2], 2 * 22528, ra[0]))
        A('v_add_u32 v%d, %d, v%d' % (ra[3], 2 * 22528, ra[1]))
        A('v_lshlrev_b32 v63, 4, v62')
        A('v_lshl_add_u32 v63, v61, 10, v63')
        A('s_lshl_b32 %s, %s, 16' % (T0, G))
        A('s_lshl_b32 %s, %s, 13' % (T1, W))
        A('s_add_u32 %s, %s, %s' % (T0, T0, T1))
        A('s_lshl_b32 %s, %s, 7' % (T1, J))
        A('s_add_u32 %s, %s, %s' % (T0, T0, T1))
        A('v_add_u32 v60, %s, v63' % T0)
        A('s_add_u32 %s, %s, %d' % (sQo[2], sQx[0], 86 * 1024))
        self.wait_flags(96)
        self.stamp('gotHH')
        hb = [64, 152]
        for T in range(2):
            A('s_mov_b32 %s, %s' % (T2, sQx[1]))
            for p in range(22):
                A('s_cmp_lt_u32 %s, %s' % (T2, sQo[2]))
                A('s_cselect_b32 %s, %s, %d' % (T0, T2, BIG))
                if T:
                    A('s_add_u32 %s, %s, %d' % (T0, T0, 86 * 1024))
                A('buffer_load_dwordx4 %s, v%d, %s, %s offen sc1' % (vr(hb[T] + 4 * p, 4), vL16, sWS, T0))
                A('s_add_u32 %s, %s, 1024' % (T2, T2))
                A('s_cmp_eq_u32 %s, %s' % (T2, sQx[3]))
                A('s_cselect_b32 %s, %s, %s' % (T2, sQx[2], T2))
        acc = [176, 208]
        B2F = 240
        for i in range(4):
            A('v_lshlrev_b32 v%d, 16, v%d' % (B2F + 2 * i, B2P + i))
            A('v_and_b32 v%d, %s, v%d' % (B2F + 2 * i + 1, HI16, B2P + i))

        def writes(T):
            return ['ds_write_b128 v%d, %s offset:%d' % (wa[b], ar(acc[T] + 16 * ct + 4 * b, 4), T * 8192 + ct * 128)
                    for ct in range(2) for b in range(4)]

        def finish(T, buf):
            for src in range(4):
                for k in range(2):
                    A('ds_read_b128 %s, v%d offset:%d' % (vr(buf + 8 * src + 4 * k, 4), ra[2 * (src >> 1) + k],
                                                          (src & 1) * 22528 + T * 8192))
            hf = buf + 32
            for i in range(4):
                A('v_lshlrev_b32 v%d, 16, v%d' % (hf + 2 * i, HRES + 4 * T + i))
                A('v_and_b32 v%d, %s, v%d' % (hf + 2 * i + 1, HI16, HRES + 4 * T + i))
            for i in range(4):
                A('v_pk_add_f32 %s, %s, %s' % (vr(hf + 2 * i, 2), vr(hf + 2 * i, 2), vr(B2F + 2 * i, 2)))
            for src in range(4):
                for i in range(4):
                    A('v_pk_add_f32 %s, %s, %s' % (vr(hf + 2 * i, 2), vr(hf + 2 * i, 2), vr(buf + 8 * src + 2 * i, 2)))
            for i in range(4):
                A('v_cvt_pk_bf16_f32 v%d, v%d, v%d' % (buf + i, hf + 2 * i, hf + 2 * i + 1))
            if T:
                A('v_add_u32 v61, 0x8000, v60')
            A('buffer_store_dwordx4 %s, v%d, %s, 0 offen' % (vr(buf, 4), 60 + T, sOUT))

        for T in range(2):
            wr = writes(0) if T else []
            for p in range(22):
                for ct in range(2):
                    d = ar(acc[T] + 16 * ct, 16)
                    A(M % (d, ar(p * 8 + 4 * ct, 4), vr(hb[T] + 4 * p, 4), '0' if p == 0 else d))
                if T and p >= 1 and wr:
                    A(wr.pop(0))
            self.stamp('D%d' % T)
        for w in writes(1):
            A(w)
        A.wait_lg()
        self.barrier()
        finish(0, 64)
        finish(1, 112)
        self.stamp('end')
        if self.pad and self.padmode:
            A('s_not_b32 s98, s100')
            A('v_mov_b32 v50, s98')
            A('s_mov_b64 exec, 1')
            A('buffer_atomic_umax v50, off, %s, 0 offset:64 sc0' % sDBG)
            A('s_mov_b32 s99, 0')
            A.label('L_pad0')
            A('s_sleep 64')
            A('s_add_u32 s99, s99, 1')
            A('s_cmp_lt_u32 s99, 4')
            A('s_cbranch_scc1 L_pad0')
            A('buffer_load_dword v51, off, %s, 0 offset:64 sc1' % sDBG)
            A('v_readfirstlane_b32 s100, v51')
            A('s_not_b32 s100, s100')
        if self.pad:
            A('s_add_u32 s100, s100, %d' % self.pad)
            A.label('L_pad')
            A('s_memrealtime s[98:99]')
            A.force_wait('lgkmcnt(0)')
            A('s_sub_u32 s98, s98, s100')
            A('s_cmp_lt_i32 s98, 0')
            A('s_cbranch_scc1 L_pad')
        if self.stamps == 2:
            A('v_readlane_b32 %s, v%d, 0' % (T0, VSTAMP))
            A('v_subrev_u32 v51, %s, v%d' % (T0, VSTAMP))
            A('v_lshlrev_b32 v50, 2, v0')
            A('v_cmp_eq_u32 vcc, 0, v0')
            A('v_mov_b32 v52, %d' % BIG)
            A('v_cndmask_b32 v50, v50, v52, vcc')
            A('s_cmp_lg_u32 s2, 77')
            A('s_cbranch_scc1 L_end')
            A('buffer_store_dword v51, v50, %s, 0 offen' % sDBG)
        elif self.stamps:
            A('s_lshl_b32 %s, s2, 10' % T0)
            A('s_add_u32 %s, %s, %d' % (T0, T0, STAMP_OFF))
            A('v_lshlrev_b32 v50, 2, v0')
            A('buffer_store_dword v%d, v50, %s, %s offen' % (VSTAMP, sWS, T0))

    def build(self):
        A = self.A
        self.prologue()
        self.phaseA()
        self.phaseB()
        self.phaseC()
        self.phaseD()
        A.label('L_end')
        A.raw('    s_endpgm')
        A.label('L_code_end')
        ref = open('cdna_kernels/%s.s.ref' % NAME).read().split('\n')
        head = [l for l in ref if l.startswith(';') and '@launch' not in l and 'Override' not in l and 'grid=ceil' not in l]
        out = '\n'.join(head) + '\n; @launch grid=(256,1,1) block=(256,1,1) lds=%d\n' % LDS_BYTES
        out += '.amdgcn_target "amdgcn-amd-amdhsa--gfx950"\n.set CODE_BYTES, L_code_end - %s - 64\n' % KERN
        out += '.text\n.globl %s\n.p2align 8\n.type %s,@function\n%s:\n' % (KERN, KERN, KERN)
        out += A.text()
        out += '''.section .rodata,"a"
.p2align 6
.amdhsa_kernel %s
  .amdhsa_next_free_vgpr 512
  .amdhsa_next_free_sgpr 102
  .amdhsa_accum_offset 256
  .amdhsa_group_segment_fixed_size 0
  .amdhsa_kernarg_size 88
  .amdhsa_user_sgpr_count 2
  .amdhsa_user_sgpr_kernarg_segment_ptr 1
  .amdhsa_system_sgpr_workgroup_id_x 1
.end_amdhsa_kernel
''' % KERN
        return out


if __name__ == '__main__':
    stamps = 2 if '--dbgstamps' in sys.argv else ('--stamps' in sys.argv)
    fast = '--fast' in sys.argv
    outp = [a for a in sys.argv[1:] if not a.startswith('--')]
    g = Gen(stamps, fast)
    for a in sys.argv:
        if a.startswith('--pad='):
            g.pad = int(a[6:])
    txt = g.build()
    path = outp[0] if outp else 'cdna_kernels/%s.s' % NAME
    open(path, 'w').write(txt)
    if stamps:
        open(path + '.names', 'w').write('\n'.join(g.stnames))
    print('instructions', g.A.count, 'nop states', g.A.nops, file=sys.stderr)
```
